```python
import torch

def _softmax(x, axis=-1):
    return torch.softmax(x, dim=axis)
def _gelu(x):
    return torch.nn.functional.gelu(x, approximate="tanh")
def _silu(x):
    return torch.nn.functional.silu(x)
def _sigmoid(x):
    return torch.sigmoid(x)
def _layernorm(x, axis=-1, eps=1e-5):
    m = x.mean(dim=axis, keepdim=True)
    v = x.var(dim=axis, keepdim=True, unbiased=False)
    return (x - m) / torch.sqrt(v + eps)
def _scatter_add(tgt, idx, src, axis=0):
    return tgt.clone().index_add_(axis, idx, src)
def _segment_sum(src, seg, n):
    out = torch.zeros((n,) + src.shape[1:], dtype=src.dtype)
    return out.index_add_(0, seg, src)
def _pad(x, pw):
    flat = tuple(v for pair in reversed(pw) for v in pair)
    return torch.nn.functional.pad(x, flat)

kernel_name = 'interleave_layers__sliding_block_cached__glu_gated_swiglu__decode'

def setup_inputs():

    _w = (lambda a: (lambda t: t.to(torch.bfloat16) if t.is_floating_point() else t)(torch.as_tensor(a)))
    def _A_setup():
        B, Sq, D = 1, 1, 512
        Hq, Hkv, Sk, Dh = 32, 8, 32768, 128
        assert Hq % Hkv == 0, (Hq, Hkv)
        return {
            "x": _w((lambda *s: torch.randn(*s, dtype=torch.bfloat16) * 0.05)(B, Sq, D)),
            "k_cache": _w((lambda *s: torch.randn(*s, dtype=torch.bfloat16) * 0.8)(B, Hkv, Sk, Dh)),
            "v_cache": _w((lambda *s: torch.randn(*s, dtype=torch.bfloat16) * 0.8)(B, Hkv, Sk, Dh)),
            "wq": _w((lambda *s: torch.randn(*s, dtype=torch.bfloat16) * 0.8)(D, Hq * Dh) * (D ** -0.5)),
            "wo": _w((lambda *s: torch.randn(*s, dtype=torch.bfloat16) * 0.8)(Hq * Dh, D) * ((Hq * Dh) ** -0.5)),
        }
    _A_in = _A_setup()

    def _B_setup():
        B, S, D, F = 1, 1, 512, 1792
        return {
            "x": _w((lambda *s: torch.randn(*s, dtype=torch.bfloat16) * 0.05)(B, S, D)),
            "w1": _w((lambda *s: torch.randn(*s, dtype=torch.bfloat16) * 0.2)(D, F) * (2.0 / D) ** 0.5),
            "w3": _w((lambda *s: torch.randn(*s, dtype=torch.bfloat16) * 0.2)(D, F) * (2.0 / D) ** 0.5),
            "w2": _w((lambda *s: torch.randn(*s, dtype=torch.bfloat16) * 0.2)(F, D) * (2.0 / F) ** 0.5),
        }
    _B_in = _B_setup()

    return {
        "A_x": _A_in["x"],
        "A_k_cache": _A_in["k_cache"],
        "A_v_cache": _A_in["v_cache"],
        "A_wq": _A_in["wq"],
        "A_wo": _A_in["wo"],
        "B_x": _B_in["x"],
        "B_w1": _B_in["w1"],
        "B_w3": _B_in["w3"],
        "B_w2": _B_in["w2"],
    }

def reference(A_x, A_k_cache, A_v_cache, A_wq, A_wo, B_x, B_w1, B_w3, B_w2):
    def _A_ref(x, k_cache, v_cache, wq, wo):
        B, Sq, D = x.shape
        Hq, Dh = 32, 128
        Hkv, Sk = k_cache.shape[1], k_cache.shape[2]
        W = min(4096, max(256, Sk // 4))
        rep = Hq // Hkv
        q = (lambda x, *d: x.permute(*d))((x @ wq).reshape(B, Sq, Hq, Dh), 0, 2, 1, 3)
        k = (lambda x, n, axis: torch.repeat_interleave(x, n, dim=axis))(k_cache[:, :, Sk - W:, :], rep, axis=1)
        v = (lambda x, n, axis: torch.repeat_interleave(x, n, dim=axis))(v_cache[:, :, Sk - W:, :], rep, axis=1)
        scores = torch.einsum("bhqd,bhkd->bhqk", q, k) * (Dh ** -0.5)
        p = _softmax(scores, axis=-1)
        o = torch.einsum("bhqk,bhkd->bhqd", p, v)
        return (lambda x, *d: x.permute(*d))(o, 0, 2, 1, 3).reshape(B, Sq, Hq * Dh) @ wo

    def _B_ref(x, w1, w3, w2):
        gate = torch.einsum("bsd,df->bsf", x, w1)
        up = torch.einsum("bsd,df->bsf", x, w3)
        h = _silu(gate) * up
        out = torch.einsum("bsf,fd->bsd", h, w2)
        return out

    x = A_x
    x = x + _A_ref(_layernorm(x, axis=-1), A_k_cache, A_v_cache, A_wq, A_wo)
    x = x + _B_ref(_layernorm(x, axis=-1), B_w1, B_w3, B_w2)
    x = x + _A_ref(_layernorm(x, axis=-1), A_k_cache, A_v_cache, A_wq, A_wo)
    x = x + _B_ref(_layernorm(x, axis=-1), B_w1, B_w3, B_w2)
    return x
```

```python
import re

_RV = re.compile(r'^-?(?:abs\()?v\[(\d+):(\d+)\]\)?$|^-?(?:abs\()?v(\d+)\)?$')
_RS = re.compile(r'^s\[(\d+):(\d+)\]$|^s(\d+)$')

def vregs(op):
    m = _RV.match(op)
    if not m: return set()
    if m.group(1) is not None: return set(range(int(m.group(1)), int(m.group(2)) + 1))
    return {int(m.group(3))}

def sregs(op):
    if op == 'vcc': return {'vcc'}
    if op == 'exec': return {'exec'}
    if op == 'm0': return {'m0'}
    m = _RS.match(op)
    if not m: return set()
    if m.group(1) is not None: return set(range(int(m.group(1)), int(m.group(2)) + 1))
    return {int(m.group(3))}

TRANS = ('v_exp_f32', 'v_log_f32', 'v_rcp_f32', 'v_rsq_f32', 'v_sqrt_f32', 'v_sin_f32', 'v_cos_f32', 'v_rcp_iflag_f32')
MFMA_PASSES = {'v_mfma_f32_4x4x4_16b_bf16': 2, 'v_mfma_f32_16x16x32_bf16': 4, 'v_mfma_f32_16x16x16_bf16': 4,
               'v_mfma_f32_32x32x16_bf16': 8}

class Ins:
    __slots__ = ('text', 'mn', 'ops', 'kind', 'vw', 'vr', 'sw', 'sr', 'dpp', 'passes', 'srcc', 'srcab', 'states', 'stdata', 'ldsdma', 'dppsrc')
    def __init__(self, text):
        self.text = text
        t = text.split(';')[0].strip()
        parts = t.split(None, 1)
        self.mn = parts[0]
        rest = parts[1] if len(parts) > 1 else ''
        ops = []; cur = ''; depth = 0
        for ch in rest:
            if ch == '[': depth += 1
            if ch == ']': depth -= 1
            if ch == ',' and depth == 0:
                ops.append(cur.strip()); cur = ''
            else: cur += ch
        if cur.strip(): ops.append(cur.strip())
        mods = ''
        if ops:
            last = ops[-1].split(None, 1)
            ops[-1] = last[0]
            if len(last) > 1: mods = last[1]
        self.ops = ops
        self.vw = set(); self.vr = set(); self.sw = set(); self.sr = set()
        self.dpp = ('quad_perm' in mods or 'row_' in mods); self.passes = 0
        self.srcc = set(); self.srcab = set(); self.states = 1; self.stdata = set(); self.ldsdma = False
        self.dppsrc = set()
        mn = self.mn
        if mn == 's_nop':
            self.kind = 'nop'; self.states = int(ops[0], 0) + 1
        elif mn.startswith('v_mfma'):
            self.kind = 'mfma'; self.passes = MFMA_PASSES[mn]
            self.vw = vregs(ops[0]); self.srcab = vregs(ops[1]) | vregs(ops[2]); self.srcc = vregs(ops[3])
            self.vr = self.srcab | self.srcc
        elif mn.startswith('v_'):
            self.kind = 'valu'
            base = mn.replace('_dpp', '').replace('_e32', '').replace('_e64', '').replace('_sdwa', '')
            if base.startswith('v_cmp'):
                self.sw = sregs(ops[0])
                for o in ops[1:]: self.vr |= vregs(o); self.sr |= sregs(o)
            elif base in ('v_readfirstlane_b32', 'v_readlane_b32'):
                self.sw = sregs(ops[0]); self.vr = vregs(ops[1])
                for o in ops[2:]: self.sr |= sregs(o)
            elif base.startswith('v_permlane') and 'swap' in base:
                self.vw = vregs(ops[0]) | vregs(ops[1]); self.vr = set(self.vw)
            else:
                self.vw = vregs(ops[0])
                k = 1
                if base in ('v_add_co_u32', 'v_sub_co_u32', 'v_addc_co_u32'):
                    self.sw = sregs(ops[1]); k = 2
                for o in ops[k:]: self.vr |= vregs(o); self.sr |= sregs(o)
                if base in ('v_fmac_f32', 'v_dot2c_f32_bf16', 'v_pk_fmac_f16'): self.vr |= self.vw
                if base == 'v_cndmask_b32' and not self.sr: self.sr.add('vcc')
                if self.dpp:
                    self.dppsrc = vregs(ops[1])
                    self.vr |= self.vw
            if base in TRANS: self.kind = 'trans'
            if base.startswith('v_dot2'): self.kind = 'dot'
            self.mn = base
        elif mn.startswith('ds_'):
            self.kind = 'ds'
            if mn.startswith('ds_read'):
                self.vw = vregs(ops[0]); self.vr = vregs(ops[1])
            else:
                for o in ops: self.vr |= vregs(o)
        elif mn.startswith('global_') or mn.startswith('buffer_'):
            self.kind = 'vmem'
            if 'lds' in mods.split() or mn.startswith('global_load_lds'):
                self.ldsdma = True
                for o in ops: self.vr |= vregs(o); self.sr |= sregs(o)
            elif '_load_' in mn:
                self.vw = vregs(ops[0])
                for o in ops[1:]: self.vr |= vregs(o); self.sr |= sregs(o)
            else:
                for o in ops: self.vr |= vregs(o); self.sr |= sregs(o)
                if mn.endswith('x4') or mn.endswith('x3'):
                    self.stdata = vregs(ops[1]) if mn.startswith('global_') else vregs(ops[0])
        elif mn.startswith('s_'):
            self.kind = 'salu'
            nodst = mn.startswith(('s_cmp', 's_cbranch', 's_branch', 's_waitcnt', 's_barrier', 's_sleep', 's_endpgm', 's_setprio', 's_bitcmp'))
            if ops and not nodst:
                self.sw = sregs(ops[0])
                for o in ops[1:]: self.sr |= sregs(o)
            else:
                for o in ops: self.sr |= sregs(o)
        else:
            raise ValueError('unknown instruction: ' + text)

VALU_KINDS = ('valu', 'trans', 'dot')

def need(p, c):
    n = 0
    if p.kind in VALU_KINDS and p.vw:
        if c.kind in VALU_KINDS and c.dpp and (p.vw & c.dppsrc): n = max(n, 2)
        if c.mn.startswith('v_permlane') and (p.vw & c.vr): n = max(n, 2)
        if c.kind == 'mfma' and (p.vw & c.vr): n = max(n, 2)
        if c.mn in ('v_readfirstlane_b32', 'v_readlane_b32') and (p.vw & c.vr): n = max(n, 1)
    if p.kind == 'trans' and c.kind in ('valu', 'dot') and (p.vw & c.vr): n = max(n, 1)
    if p.kind == 'dot' and (p.vw & (c.vr | c.vw)):
        if c.kind == 'dot' and c.mn == p.mn:
            ab = set()
            for o in c.ops[1:3]: ab |= vregs(o)
            if p.vw & ab: n = max(n, 3)
        else: n = max(n, 3)
    if p.kind == 'mfma':
        tab = {2: 0, 4: 1, 8: 2}[p.passes]
        if c.kind == 'mfma':
            if p.vw & c.srcc:
                if p.vw == c.srcc and p.passes == c.passes: n = max(n, (2, 0, 0)[tab])
                else: n = max(n, (4, 6, 10)[tab])
            if p.vw & c.srcab: n = max(n, (5, 8, 12)[tab])
            if (p.vw & c.vw) and not (p.vw & c.srcc): n = max(n, (5, 8, 12)[tab])
        elif c.kind in VALU_KINDS:
            if p.vw & (c.vr | c.vw): n = max(n, (5, 8, 12)[tab])
            if p.srcc & c.vw: n = max(n, (1, 3, 7)[tab])
        elif c.kind in ('vmem', 'ds'):
            if p.vw & (c.vr | c.vw): n = max(n, (5, 8, 12)[tab])
    if p.kind in VALU_KINDS and p.sw:
        if c.kind in VALU_KINDS and (p.sw & c.sr):
            n = max(n, 4 if c.mn in ('v_readlane_b32', 'v_writelane_b32') else 2)
        if c.kind == 'vmem' and (p.sw & c.sr): n = max(n, 5)
    if p.kind == 'salu' and 'm0' in p.sw and c.kind == 'vmem' and c.ldsdma: n = max(n, 1)
    if p.stdata and (p.stdata & c.vw):
        n = max(n, 2 if c.kind in VALU_KINDS else 1)
    return n

class Asm:
    def __init__(self):
        self.lines = []; self.hist = []; self.nops = 0; self.count = 0
    def raw(self, text):
        self.lines.append(text)
    def comment(self, text):
        self.lines.append('    ; ' + text)
    def label(self, name, keep=True):
        self.lines.append(name + ':')
        if not keep: self.hist = []
    def __call__(self, text):
        for t in text.split('\n'):
            t = t.strip()
            if not t: continue
            if t.startswith(';'): self.lines.append('    ' + t); continue
            if t.endswith(':'): self.label(t[:-1]); continue
            self.emit(t)
    def emit(self, t):
        c = Ins(t)
        req = 0; dist = 0
        for p in reversed(self.hist):
            r = need(p, c) - dist
            if r > req: req = r
            dist += p.states
            if dist > 24: break
        while req > 0:
            k = min(req, 16)
            nop = Ins('s_nop %d' % (k - 1))
            self.lines.append('    s_nop %d' % (k - 1)); self.hist.append(nop); self.nops += 1
            req -= k
        self.lines.append('    ' + t); self.hist.append(c); self.count += 1
        if len(self.hist) > 64: self.hist = self.hist[-40:]
    def text(self):
        return '\n'.join(self.lines) + '\n'
```

```python
import sys, os
from asmgen import Asm

NAME = 'interleave_layers__sliding_block_cached__glu_gated_swiglu__decode'
KN = NAME + '_kernel'

WS_Q, WS_ML, WS_O, WS_X1, WS_H, WS_X2 = 0x0000, 0x4000, 0x8000, 0xC000, 0x10000, 0x14000
WS_HS = 0x18000
WS_Y = 0x20000
WS_EPOCH = 0x60000
WS_OP = 0x80000
WS_STAMP = 0x200000
L_Q = 0; L_P = 1280; L_M = 2304; L_YZ = 2368; L_F = 2624
L_WQ, L_WO, L_W1, L_W3, L_W2, L_V = 4096, 20480, 36864, 45056, 53248, 61440
F_WO, F_W13W2, F_O, F_X1, F_X2, F_DONE, F_MODE = L_F, L_F + 16, L_F + 32, L_F + 36, L_F + 40, L_F + 44, L_F + 48
LDS_BYTES = 94208
SPIN = 1 << 17

C_SCALE = 0.08838834764831845 * 1.4426950408889634
import struct
def f2u(x): return struct.unpack('<I', struct.pack('<f', x))[0]

sX, sK, sV, sWQ, sWO, sW1, sW3, sW2, sOUT, sDBG, sWS = 4, 6, 8, 10, 12, 16, 18, 20, 22, 24, 26
sG, sJ, sW, sWL, sE, sT, sMode, sPass, sSpin = 28, 29, 30, 31, 32, 33, 34, 35, 44
sSRD = 36
sA, sB, sC, sD = 45, 46, 47, 48
sM0 = 49
sMaskA = 50
sMaskB = 52
sMaskC = 54
sHi = 56
sPerm = 57
sCs = 58
sF00 = 59
sTmp2 = 60
sStamp0 = 64

def P(r, n=1):
    return 'v%d' % r if n == 1 else 'v[%d:%d]' % (r, r + n - 1)
def S2(r): return 's[%d:%d]' % (r, r + 1)

class Gen:
    def __init__(self, stamps=False, nt_kv=False, nt_w=False, force_slow=False, onepass=False):
        self.onepass = onepass
        self.a = Asm(); self.stamps = stamps; self.nlab = 0; self.deferred = []
        self.nt_kv = ' nt' if nt_kv else ''; self.nt_w = ' nt' if nt_w else ''
        self.force_slow = force_slow
        self.nstamp = {}
    def lab(self, p):
        self.nlab += 1; return 'L_%s_%d' % (p, self.nlab)
    def stamp(self, role, name, once=False):
        if not self.stamps: return
        lst = self.nstamp.setdefault(role, [])
        keys = [name + '0'] if once else [name + '0', name + '1']
        for k in keys:
            if k not in lst: lst.append(k)
        assert len(lst) <= 18, 'too many stamps'
        idx = [lst.index(k) for k in keys]
        r = lambda i: f's[{sStamp0+2*i}:{sStamp0+2*i+1}]'
        if once:
            self.a(f's_memrealtime {r(idx[0])}')
            return
        l1 = self.lab('st'); l2 = self.lab('st')
        self.a(f's_cmp_eq_u32 s{sPass}, 0\ns_cbranch_scc0 {l1}\ns_memrealtime {r(idx[0])}\ns_branch {l2}\n{l1}:\ns_memrealtime {r(idx[1])}\n{l2}:')
    def dump_stamps(self):
        if not self.stamps: return
        a = self.a
        a('s_waitcnt lgkmcnt(0)')
        a(f's_lshl_b32 s{sA}, s2, 3\ns_add_u32 s{sA}, s{sA}, s{sW}\ns_lshl_b32 s{sA}, s{sA}, 7\ns_add_u32 s{sA}, s{sA}, {WS_STAMP}')
        a('s_mov_b64 exec, 1')
        a(f'v_mov_b32 v2, s{sA}')
        for i in range(18):
            a(f'v_mov_b32 v3, s{sStamp0+2*i}\nglobal_store_dword v2, v3, {S2(sWS)} offset:{4*i}\ns_nop 0')
        a('s_waitcnt vmcnt(0)')
    def srd(self, ptr, nbytes):
        self.a(f's_mov_b32 s{sSRD}, s{ptr}\ns_and_b32 s{sSRD+1}, s{ptr+1}, 0xffff\ns_mov_b32 s{sSRD+2}, {nbytes}\ns_mov_b32 s{sSRD+3}, 0x20000')
    def publish(self, store):
        a = self.a
        if self.force_slow:
            a(store + ' sc1'); return
        ls = self.lab('slow'); lr = self.lab('ret')
        a(f's_cmp_lg_u32 s{sMode}, 0\ns_cbranch_scc1 {ls}')
        a(store)
        a.label(lr)
        self.deferred.append((ls, store + ' sc1', lr))
    def flush_deferred(self):
        for ls, st, lr in self.deferred:
            self.a.label(ls, keep=False); self.a(st); self.a(f's_branch {lr}')
        self.deferred = []
    def spin_tail(self, loop, code, sleep=0):
        a = self.a
        if sleep: a(f's_sleep {sleep}')
        a(f's_sub_u32 s{sSpin}, s{sSpin}, 1\ns_cbranch_scc0 {loop}\ns_mov_b32 s{sA}, {code}\ns_branch L_fail')
    def spin_init(self):
        self.a(f's_mov_b32 s{sSpin}, {SPIN}')
    def wait_flag(self, vaddr, off, n, vtmp, vT, code, sleep=1):
        a = self.a; lp = self.lab('wf'); ok = self.lab('ok')
        self.spin_init()
        a.label(lp)
        mn = {1: 'ds_read_b32', 2: 'ds_read_b64', 4: 'ds_read_b128'}[n]
        a(f'{mn} {P(vtmp, n)}, {P(vaddr)} offset:{off}\ns_waitcnt lgkmcnt(0)')
        if n == 1:
            a(f'v_cmp_ne_u32 vcc, {P(vtmp)}, {P(vT)}')
        elif n == 2:
            a(f'v_bitop3_b32 {P(vtmp)}, {P(vtmp)}, {P(vtmp+1)}, {P(vT)} bitop3:0x7e\nv_cmp_ne_u32 vcc, 0, {P(vtmp)}')
        else:
            a(f'v_bitop3_b32 {P(vtmp)}, {P(vtmp)}, {P(vtmp+1)}, {P(vT)} bitop3:0x7e\nv_bitop3_b32 {P(vtmp+2)}, {P(vtmp+2)}, {P(vtmp+3)}, {P(vT)} bitop3:0x7e\nv_or_b32 {P(vtmp)}, {P(vtmp)}, {P(vtmp+2)}\nv_cmp_ne_u32 vcc, 0, {P(vtmp)}')
        a(f's_cbranch_vccz {ok}')
        self.spin_tail(lp, code, sleep)
        a.label(ok)
    def set_flag(self, vaddr, off, vT):
        self.a(f's_mov_b64 exec, 1\nds_write_b32 {P(vaddr)}, {P(vT)} offset:{off}\ns_mov_b64 exec, -1')
    def interleave(self, *chains):
        chains = [list(c) for c in chains]
        while any(chains):
            for c in chains:
                if c: self.a(c.pop(0))
    def allred(self, op, y, t, strides=(4, 8), rows=True):
        L = []
        for s in strides:
            L.append(f'{op}_dpp {P(y)}, {P(y)}, {P(y)} row_ror:{s} row_mask:0xf bank_mask:0xf')
        if rows:
            for sw in ('v_permlane16_swap_b32', 'v_permlane32_swap_b32'):
                L += [f'v_mov_b32 {P(t)}, {P(y)}', f'{sw} {P(y)}, {P(t)}', f'{op} {P(y)}, {P(y)}, {P(t)}']
        return L
    def gather16(self, R, vaddr, vT, code, name, pre=None):
        a = self.a; lp = self.lab('g'); ok = self.lab('ok')
        self.spin_init()
        a.label(lp)
        a(f'global_load_dwordx4 {P(R,4)}, {P(vaddr)}, {S2(sWS)} sc1\nglobal_load_dwordx4 {P(R+4,4)}, {P(vaddr)}, {S2(sWS)} offset:16 sc1')
        a('s_waitcnt vmcnt(0)')
        e = R + 8
        a(f'v_bitop3_b32 {P(e)}, {P(R)}, {P(R+1)}, {P(vT)} bitop3:0x7e')
        a(f'v_bitop3_b32 {P(e+1)}, {P(R+2)}, {P(R+3)}, {P(vT)} bitop3:0x7e')
        a(f'v_bitop3_b32 {P(e+2)}, {P(R+4)}, {P(R+5)}, {P(vT)} bitop3:0x7e')
        a(f'v_bitop3_b32 {P(e+3)}, {P(R+6)}, {P(R+7)}, {P(vT)} bitop3:0x7e')
        a(f'v_or3_b32 {P(e)}, {P(e)}, {P(e+1)}, {P(e+2)}\nv_or_b32 {P(e)}, {P(e)}, {P(e+3)}')
        a(f'v_cmp_ne_u16 vcc, 0, {P(e)}')
        a(f's_cbranch_vccz {ok}')
        self.spin_tail(lp, code)
        a.label(ok)
    def pack8(self, XP, R):
        for i in range(4):
            self.a(f'v_perm_b32 {P(XP+i)}, {P(R+2*i+1)}, {P(R+2*i)}, s{sPerm}')

    def build(self):
        a = self.a
        a.raw(f'.amdgcn_target "amdgcn-amd-amdhsa--gfx950"\n.text\n.globl {KN}\n.p2align 8\n.type {KN},@function\n{KN}:')
        a('s_cmp_ge_u32 s2, 256\ns_cbranch_scc1 L_end')
        a(f's_load_dwordx16 s[4:19], s[0:1], 0\ns_load_dwordx8 s[20:27], s[0:1], 64')
        a(f'v_lshrrev_b32 v2, 6, v0\nv_and_b32 v1, 63, v0\ns_and_b32 s{sG}, s2, 7\ns_lshr_b32 s{sJ}, s2, 3')
        a(f'v_readfirstlane_b32 s{sW}, v2')
        a(f's_mov_b32 s{sPass}, 0')
        if self.stamps:
            for i in range(18): a(f's_mov_b32 s{sStamp0+2*i}, 0')
        a(f's_and_b32 s{sWL}, s{sW}, 3')
        a(f's_cmp_ge_u32 s{sW}, 4\ns_cbranch_scc1 L_D')
        self.build_A()
        self.build_D()
        self.flush_deferred()
        a.label('L_fail', keep=False)
        a(f's_mov_b64 exec, 1\nv_mov_b32 v2, s{sA}\nv_mov_b32 v3, 0\nglobal_store_dword v3, v2, {S2(sDBG)}\ns_waitcnt vmcnt(0)')
        a.label('L_end')
        a('s_endpgm')
        return a.text()

    def build_A(self):
        a = self.a
        vl = 1
        vKo, vVo, vWo, vFo, vW2o, vWQo = 2, 3, 4, 5, 6, 7
        vQa, vPw, vPr, vMw, vMr, vVa0, vVa1, vOPa = 8, 9, 10, 11, 12, 13, 14, 15
        vT32, vT16, vT8, vZ, vYa, vYL, vXa, vX0, vX1 = 16, 17, 18, 19, 20, 21, 22, 23, 24
        t0, t1, t2, t3 = 25, 26, 27, 28
        vOut = 29
        K, V, Q, Sx, Pw, Pa, D, M4, AL, O = 32, 64, 96, 112, 120, 124, 140, 172, 176, 180
        R = 188
        G, J, W = f's{sG}', f's{sJ}', f's{sWL}'
        self.stamp('A', 'start', once=True)
        a(f'v_lshrrev_b32 {P(t0)}, 1, {P(vl)}\nv_lshlrev_b32 {P(t0)}, 13, {P(t0)}\nv_and_b32 {P(t1)}, 1, {P(vl)}\nv_lshlrev_b32 {P(t1)}, 4, {P(t1)}')
        a(f's_lshl_b32 s{sA}, {G}, 10\ns_lshl_b32 s{sB}, {J}, 5\ns_add_u32 s{sA}, s{sA}, s{sB}')
        a(f'v_add3_u32 {P(vWQo)}, {P(t0)}, {P(t1)}, s{sA}')
        a(f'v_and_b32 {P(t0)}, 15, {P(vl)}\nv_lshlrev_b32 {P(t0)}, 8, {P(t0)}\nv_lshrrev_b32 {P(t2)}, 4, {P(vl)}\nv_lshl_add_u32 {P(vKo)}, {P(t2)}, 4, {P(t0)}')
        a(f's_lshl_b32 s{sC}, {W}, 20\ns_lshl_b32 s{sM0}, {W}, 12')
        a('s_waitcnt lgkmcnt(0)')
        self.srd(sWQ, 4194304)
        for k in range(4):
            a(f's_add_u32 s{sD}, s{sC}, {k*262144}\ns_add_u32 m0, s{sM0}, {L_WQ + 1024*k}')
            a(f'buffer_load_dwordx4 {P(vWQo)}, s[{sSRD}:{sSRD+3}], s{sD} offen{self.nt_w} lds')
        self.srd(sK, 67108864)
        a(f's_lshl_b32 s{sA}, {G}, 23\ns_lshl_b32 s{sB}, {J}, 15\ns_add_u32 s{sA}, s{sA}, s{sB}\ns_add_u32 s{sA}, s{sA}, 7340032')
        a(f's_lshl_b32 s{sB}, {W}, 13\ns_add_u32 s{sB}, s{sB}, s{sA}\ns_add_u32 s{sC}, s{sB}, 4096')
        for T in range(2):
            for kk in range(4):
                r = K + 16*T + 4*kk
                a(f'buffer_load_dwordx4 {P(r,4)}, {P(vKo)}, s[{sSRD}:{sSRD+3}], s{sB if T == 0 else sC} offen offset:{64*kk}{self.nt_kv}')
        a(f'v_lshrrev_b32 {P(t0)}, 2, {P(vl)}\nv_lshlrev_b32 {P(t0)}, 8, {P(t0)}\nv_lshrrev_b32 {P(t1)}, 3, {P(vl)}\nv_and_b32 {P(t1)}, 2, {P(t1)}\nv_and_b32 {P(t2)}, 3, {P(vl)}\nv_xor_b32 {P(t1)}, {P(t1)}, {P(t2)}')
        a(f'v_lshl_add_u32 {P(t0)}, {P(t1)}, 4, {P(t0)}\ns_lshl_b32 s{sB}, {W}, 6\nv_add_u32 {P(vVo)}, s{sB}, {P(t0)}')
        self.srd(sV, 67108864)
        a(f's_lshl_b32 s{sM0}, {W}, 13')
        for n in range(8):
            a(f's_add_u32 s{sD}, s{sA}, {4096*n}\ns_add_u32 m0, s{sM0}, {L_V + 1024*n}')
            a(f'buffer_load_dwordx4 {P(vVo)}, s[{sSRD}:{sSRD+3}], s{sD} offen{self.nt_kv} lds')
        a(f'v_lshrrev_b32 {P(t0)}, 1, {P(vl)}\nv_and_b32 {P(t0)}, 3, {P(t0)}\nv_lshlrev_b32 {P(t0)}, 7, {P(t0)}')
        a(f'v_lshrrev_b32 {P(t1)}, 5, {P(vl)}\nv_lshl_add_u32 {P(t0)}, {P(t1)}, 2, {P(t0)}')
        a(f'v_lshrrev_b32 {P(t1)}, 3, {P(vl)}\nv_and_b32 {P(t1)}, 3, {P(t1)}\nv_add_u32 {P(t0)}, {P(t0)}, {P(t1)}\nv_lshlrev_b32 {P(t0)}, 10, {P(t0)}')
        a(f'v_and_b32 {P(t1)}, 1, {P(vl)}\nv_lshlrev_b32 {P(t1)}, 4, {P(t1)}\ns_lshl_b32 s{sB}, {J}, 5\nv_add3_u32 {P(vWo)}, {P(t0)}, {P(t1)}, s{sB}')
        self.srd(sWO, 4194304)
        a(f's_lshl_b32 s{sB}, {G}, 19\ns_lshl_b32 s{sC}, {W}, 15\ns_add_u32 s{sB}, s{sB}, s{sC}\ns_lshl_b32 s{sM0}, {W}, 12')
        for k in range(4):
            a(f's_add_u32 s{sD}, s{sB}, {8192*k}\ns_add_u32 m0, s{sM0}, {L_WO + 1024*k}')
            a(f'buffer_load_dwordx4 {P(vWo)}, s[{sSRD}:{sSRD+3}], s{sD} offen{self.nt_w} lds')
        a(f's_load_dword s{sE}, {S2(sWS)}, {WS_EPOCH}')
        a(f's_movk_i32 s{sB}, 3584\nv_mul_lo_u32 {P(vFo)}, {P(vl)}, s{sB}\ns_mul_i32 s{sB}, {G}, 448\ns_lshl_b32 s{sC}, {J}, 4\ns_add_u32 s{sB}, s{sB}, s{sC}')
        a(f's_cmp_ge_u32 {J}, 28\ns_cselect_b32 s{sB}, 0x7f000000, s{sB}\nv_add_u32 {P(vFo)}, s{sB}, {P(vFo)}')
        a(f'v_lshrrev_b32 {P(t0)}, 1, {P(vl)}\nv_lshlrev_b32 {P(t0)}, 10, {P(t0)}\nv_and_b32 {P(t1)}, 1, {P(vl)}\nv_lshlrev_b32 {P(t1)}, 4, {P(t1)}\ns_lshl_b32 s{sB}, {J}, 5\nv_add3_u32 {P(vW2o)}, {P(t0)}, {P(t1)}, s{sB}')
        a(f'v_and_b32 {P(t0)}, 3, {P(vl)}\nv_lshrrev_b32 {P(t2)}, 4, {P(vl)}\nv_mul_u32_u24 {P(t1)}, 320, {P(t0)}\nv_lshl_add_u32 {P(t1)}, {P(t2)}, 4, {P(t1)}\nv_add_u32 {P(vQa)}, {L_Q}, {P(t1)}')
        a(f'v_lshlrev_b32 {P(t1)}, 6, {P(t2)}\nv_lshl_add_u32 {P(t1)}, {P(t0)}, 4, {P(t1)}\nv_add_u32 {P(vPr)}, {L_P}, {P(t1)}\ns_lshl_b32 s{sB}, {W}, 8\nv_add_u32 {P(vPw)}, s{sB}, {P(vPr)}')
        a(f'v_lshlrev_b32 {P(t1)}, 4, {P(t0)}\nv_add_u32 {P(vMr)}, {L_M}, {P(t1)}\ns_lshl_b32 s{sB}, {W}, 2\nv_add_u32 {P(vMw)}, s{sB}, {P(vMr)}')
        a(f'v_and_b32 {P(t1)}, 15, {P(vl)}\nv_lshrrev_b32 {P(t1)}, 2, {P(t1)}\nv_lshl_add_u32 {P(t1)}, {P(t2)}, 2, {P(t1)}\nv_lshlrev_b32 {P(t1)}, 6, {P(t1)}')
        a(f'v_lshlrev_b32 {P(t3)}, 3, {P(t0)}\nv_add_u32 {P(t1)}, {P(t1)}, {P(t3)}')
        a(f's_lshl_b32 s{sB}, {W}, 13\ns_add_u32 s{sB}, s{sB}, {L_V}\nv_add_u32 {P(t1)}, s{sB}, {P(t1)}')
        a(f'v_and_b32 {P(t3)}, 1, {P(t2)}\nv_lshlrev_b32 {P(t3)}, 5, {P(t3)}\nv_add_u32 {P(vVa0)}, {P(t1)}, {P(t3)}\nv_xor_b32 {P(t3)}, 32, {P(t3)}\nv_add_u32 {P(vVa1)}, {P(t1)}, {P(t3)}')
        a(f's_lshl_b32 s{sB}, {G}, 16\ns_lshl_b32 s{sC}, {W}, 14\ns_add_u32 s{sB}, s{sB}, s{sC}\ns_lshl_b32 s{sC}, {J}, 6\ns_add_u32 s{sB}, s{sB}, s{sC}\ns_add_u32 s{sB}, s{sB}, {WS_OP}')
        a(f'v_lshlrev_b32 {P(t1)}, 11, {P(t2)}\nv_lshl_add_u32 {P(t1)}, {P(t0)}, 4, {P(t1)}\nv_add_u32 {P(vOPa)}, s{sB}, {P(t1)}')
        a(f'v_and_b32 {P(t1)}, 15, {P(vl)}\nv_lshrrev_b32 {P(t1)}, 1, {P(t1)}\ns_lshl_b32 s{sB}, {J}, 3\nv_add_u32 {P(t1)}, s{sB}, {P(t1)}')
        a(f'v_lshrrev_b32 {P(t3)}, 6, {P(t1)}\nv_lshlrev_b32 {P(t3)}, 14, {P(t3)}\nv_and_b32 {P(t1)}, 63, {P(t1)}\nv_lshl_add_u32 {P(t1)}, {P(t1)}, 7, {P(t3)}')
        a(f'v_and_b32 {P(t3)}, 1, {P(vl)}\nv_lshl_add_u32 {P(t3)}, {P(t2)}, 1, {P(t3)}\nv_lshlrev_b32 {P(t3)}, 3, {P(t3)}')
        a(f's_lshl_b32 s{sB}, {W}, 13\ns_add_u32 s{sB}, s{sB}, {WS_Y}\nv_add3_u32 {P(vYa)}, {P(t1)}, {P(t3)}, s{sB}')
        a(f'v_add_u32 {P(vYL)}, {L_YZ}, {P(t3)}')
        a(f's_lshl_b32 s{sB}, {G}, 11\ns_lshl_b32 s{sC}, {J}, 6\ns_add_u32 s{sB}, s{sB}, s{sC}\nv_add_u32 {P(vXa)}, s{sB}, {P(t3)}')
        a(f's_lshl_b32 s{sB}, {J}, 5\nv_lshrrev_b32 {P(t3)}, 1, {P(t3)}\nv_add_u32 {P(vOut)}, s{sB}, {P(t3)}')
        a(f'global_load_dword {P(vX1)}, {P(vOut)}, {S2(sX)}')
        a(f'v_mov_b32 {P(vZ)}, 0')
        a(f's_mov_b32 s{sHi}, 0xffff0000\ns_mov_b32 s{sCs}, {f2u(C_SCALE)}\ns_mov_b32 s{sF00}, 0xffffff00')
        a(f's_mov_b32 s{sMaskB}, 0x00030003\ns_mov_b32 s{sMaskB+1}, 0x00030003\ns_lshl_b32 s{sA}, {G}, 1\ns_lshl_b64 {S2(sMaskA)}, {S2(sMaskB)}, s{sA}')
        a(f's_mov_b32 s{sMaskC}, 0x000f000f\ns_mov_b32 s{sMaskC+1}, 0x000f000f')
        a('s_waitcnt lgkmcnt(0)')
        a(f's_add_u32 s{sT}, s{sE}, 1\nv_mov_b32 {P(vT32)}, s{sT}\nv_and_b32 {P(vT16)}, 0xffff, {P(vT32)}\nv_and_b32 {P(vT8)}, 0xff, {P(vT32)}')
        a('s_waitcnt vmcnt(21)\ns_barrier')
        self.stamp('A', 'B1', once=True)
        a(f'ds_read_b32 {P(t0)}, {P(vZ)} offset:{F_MODE}\ns_waitcnt lgkmcnt(0)\nv_readfirstlane_b32 s{sMode}, {P(t0)}')
        a.label('L_A_loop')
        a('s_barrier')
        self.stamp('A', 'X')
        for kk in range(4):
            a(f'ds_read_b128 {P(Q+4*kk,4)}, {P(vQa)} offset:{64*kk}')
        a('s_waitcnt vmcnt(13)')
        a('s_waitcnt lgkmcnt(0)')
        for kk in range(4):
            for T in range(2):
                c = '0' if kk == 0 else P(Sx+4*T, 4)
                a(f'v_mfma_f32_16x16x32_bf16 {P(Sx+4*T,4)}, {P(K+16*T+4*kk,4)}, {P(Q+4*kk,4)}, {c}')
        a(f'v_max3_f32 {P(t0)}, {P(Sx)}, {P(Sx+1)}, {P(Sx+2)}\nv_max3_f32 {P(t1)}, {P(Sx+4)}, {P(Sx+5)}, {P(Sx+6)}')
        a(f'v_max3_f32 {P(t0)}, {P(t0)}, {P(Sx+3)}, {P(Sx+7)}\nv_max_f32 {P(t0)}, {P(t0)}, {P(t1)}')
        for i in self.allred('v_max_f32', t0, t1, strides=()): a(i)
        a(f'v_mul_f32 {P(t0)}, s{sCs}, {P(t0)}')
        for i in range(8): a(f'v_fma_f32 {P(Sx+i)}, {P(Sx+i)}, s{sCs}, -{P(t0)}')
        for i in range(8): a(f'v_exp_f32 {P(Sx+i)}, {P(Sx+i)}')
        for i in range(4): a(f'v_cvt_pk_bf16_f32 {P(Pw+i)}, {P(Sx+2*i)}, {P(Sx+2*i+1)}')
        a(f's_mov_b64 exec, {S2(sMaskC)}\nds_write_b128 {P(vPw)}, {P(Pw,4)}\ns_mov_b64 exec, 15\nds_write_b32 {P(vMw)}, {P(t0)}\ns_mov_b64 exec, -1')
        a('s_waitcnt lgkmcnt(0)\ns_barrier')
        self.stamp('A', 'P')
        for gq in range(4):
            a(f'ds_read_b128 {P(Pa+4*gq,4)}, {P(vPr)} offset:{256*gq}')
        a(f'ds_read_b128 {P(M4,4)}, {P(vMr)}')
        lskip = self.lab('p0')
        a(f's_cmp_lg_u32 s{sPass}, 0\ns_cbranch_scc1 {lskip}')
        l01 = self.lab('a01'); lv = self.lab('av')
        a(f's_cmp_lt_u32 s{sWL}, 2\ns_cbranch_scc1 {l01}')
        a(f's_sub_u32 s{sA}, s{sWL}, 2\ns_mul_i32 s{sB}, s{sA}, {4*229376}\ns_lshl_b32 s{sM0}, s{sA}, 12')
        for ptr, lbase in ((sW1, L_W1), (sW3, L_W3)):
            self.srd(ptr, 1835008)
            for k in range(4):
                a(f's_add_u32 s{sD}, s{sB}, {229376*k}\ns_add_u32 m0, s{sM0}, {lbase + 1024*k}')
                a(f'buffer_load_dwordx4 {P(vFo)}, s[{sSRD}:{sSRD+3}], s{sD} offen{self.nt_w} lds')
        self.srd(sW2, 1835008)
        a(f's_mul_i32 s{sB}, s{sG}, {224*1024}\ns_lshl_b32 s{sC}, s{sA}, 17\ns_add_u32 s{sB}, s{sB}, s{sC}')
        for k in range(4):
            a(f's_add_u32 s{sD}, s{sB}, {32768*k}\ns_add_u32 m0, s{sM0}, {L_W2 + 1024*k}')
            a(f'buffer_load_dwordx4 {P(vW2o)}, s[{sSRD}:{sSRD+3}], s{sD} offen{self.nt_w} lds')
        a(f's_waitcnt vmcnt(17)\ns_branch {lv}')
        a.label(l01)
        a('s_waitcnt vmcnt(5)')
        a.label(lv)
        self.stamp('A', 'Vland', once=True)
        for t in range(2):
            for gq in range(4):
                for hh in range(2):
                    r = V + 16*t + 4*gq + 2*hh
                    a(f'ds_read_b64_tr_b16 {P(r,2)}, {P(vVa0 if t == 0 else vVa1)} offset:{2048*gq + 1024*hh}')
        a.label(lskip)
        a('s_waitcnt lgkmcnt(0)')
        mf = []
        for t in range(2):
            for gq in range(4):
                mf.append(f'v_mfma_f32_16x16x32_bf16 {P(D+16*t+4*gq,4)}, {P(V+16*t+4*gq,4)}, {P(Pa+4*gq,4)}, 0')
        al = [f'v_max3_f32 {P(t0)}, {P(M4)}, {P(M4+1)}, {P(M4+2)}', f'v_max_f32 {P(t0)}, {P(t0)}, {P(M4+3)}']
        al += [f'v_sub_f32 {P(AL+i)}, {P(M4+i)}, {P(t0)}' for i in range(4)]
        al += [f'v_exp_f32 {P(AL+i)}, {P(AL+i)}' for i in range(4)]
        for i in range(8):
            a(mf[i])
            if al: a(al.pop(0))
        for x in al: a(x)
        for t in range(2):
            for gq in range(4):
                d = D + 16*t + 4*gq
                alp = AL + (gq & 2); hi = gq & 1
                sel = f'op_sel:[0,{hi},0] op_sel_hi:[1,{hi},1]'
                for h2 in range(2):
                    o = O + 4*t + 2*h2
                    if gq == 0:
                        a(f'v_pk_mul_f32 {P(o,2)}, {P(d+2*h2,2)}, {P(alp,2)} op_sel:[0,{hi}] op_sel_hi:[1,{hi}]')
                    else:
                        a(f'v_pk_fma_f32 {P(o,2)}, {P(d+2*h2,2)}, {P(alp,2)}, {P(o,2)} {sel}')
        for i in range(8): a(f'v_and_or_b32 {P(O+i)}, {P(O+i)}, s{sF00}, {P(vT8)}')
        a(f'v_add_u32 {P(t1)}, 8192, {P(vOPa)}')
        a(f's_mov_b64 exec, {S2(sMaskC)}')
        self.publish(f'global_store_dwordx4 {P(vOPa)}, {P(O,4)}, {S2(sWS)}')
        self.publish(f'global_store_dwordx4 {P(t1)}, {P(O+4,4)}, {S2(sWS)}')
        a('s_mov_b64 exec, -1')
        self.stamp('A', 'OPpub')
        lsk2 = self.lab('p0b'); l01b = self.lab('a01b'); lj = self.lab('aj')
        a(f's_cmp_lg_u32 s{sPass}, 0\ns_cbranch_scc1 {lsk2}')
        a(f's_lshl_b32 s{sA}, s{sWL}, 2\nv_mov_b32 {P(t0)}, s{sA}')
        a(f's_cmp_lt_u32 s{sWL}, 2\ns_cbranch_scc1 {l01b}')
        a('s_waitcnt vmcnt(15)')
        self.set_flag(t0, F_WO, vT32)
        a('s_waitcnt vmcnt(6)')
        self.set_flag(t0, F_W13W2 - 8, vT32)
        a('s_waitcnt vmcnt(2)')
        self.set_flag(t0, F_W13W2, vT32)
        a(f's_branch {lj}')
        a.label(l01b)
        a('s_waitcnt vmcnt(2)')
        self.set_flag(t0, F_WO, vT32)
        a(f'v_lshlrev_b32 {P(vX0)}, 16, {P(vX1)}\nv_and_b32 {P(vX1)}, s{sHi}, {P(vX1)}')
        a.label(lj)
        a.label(lsk2)
        lnext = self.lab('anext')
        a(f's_cmp_ge_u32 s{sWL}, 2\ns_cbranch_scc1 {lnext}')
        self.colgather(R, vYa, 0, vYL, 0, vT8, 20)
        self.stamp('A', 'S5got')
        self.resid_publish(R, vX0, vX1, vXa, WS_X1, vT16, t0, t1, t2)
        self.set_flag(vZ, F_X1, vT32)
        self.stamp('A', 'S5pub')
        lfin = self.lab('afin')
        a(f's_cmp_lg_u32 s{sPass}, 0\ns_cbranch_scc1 {lfin}')
        self.colgather(R, vYa, 0x10000, vYL, 64, vT8, 22)
        self.stamp('A', 'S8got')
        self.resid_publish(R, vX0, vX1, vXa, WS_X2, vT16, t0, t1, t2)
        self.set_flag(vZ, F_X2, vT32)
        a.label(lnext)
        if self.onepass: a('s_branch L_A_end')
        a(f's_cmp_lg_u32 s{sPass}, 0\ns_cbranch_scc1 L_A_end')
        a(f's_mov_b32 s{sPass}, 1\ns_add_u32 s{sT}, s{sT}, 1\nv_mov_b32 {P(vT32)}, s{sT}\nv_and_b32 {P(vT16)}, 0xffff, {P(vT32)}\nv_and_b32 {P(vT8)}, 0xff, {P(vT32)}')
        a(f'v_add_u32 {P(vYa)}, 0x20000, {P(vYa)}\nv_add_u32 {P(vYL)}, 128, {P(vYL)}')
        a('s_branch L_A_loop')
        a.label(lfin, keep=False)
        a(f's_cmp_lg_u32 s{sG}, 0\ns_cbranch_scc1 L_A_end')
        self.colgather(R, vYa, 0x10000, vYL, 64, vT8, 24, abort=(vZ, F_DONE, vT32, t3, 'L_A_end'))
        self.stamp('A', 'S8got')
        a(f'v_add_f32 {P(R)}, {P(R)}, {P(vX0)}\nv_add_f32 {P(R+1)}, {P(R+1)}, {P(vX1)}\nv_cvt_pk_bf16_f32 {P(t0)}, {P(R)}, {P(R+1)}')
        a(f's_mov_b64 exec, {S2(sMaskB)}\nglobal_store_dword {P(vOut)}, {P(t0)}, {S2(sOUT)}\ns_mov_b64 exec, -1')
        self.set_flag(vZ, F_DONE, vT32)
        a(f's_cmp_lg_u32 s2, 0\ns_cbranch_scc1 L_A_end')
        a(f's_mov_b64 exec, 1\nv_mov_b32 {P(t1)}, {WS_EPOCH}\nglobal_store_dword {P(t1)}, {P(vT32)}, {S2(sWS)}')
        a.label('L_A_end', keep=False)
        a('s_mov_b64 exec, -1')
        self.dump_stamps()
        a('s_endpgm')

    def colgather(self, R, vYa, goff, vYL, loff, vT8, code, abort=None):
        a = self.a
        lp = self.lab('cgo'); ok = self.lab('ok')
        a(f's_mov_b64 exec, {S2(sMaskA)}')
        self.spin_init()
        a.label(lp)
        a(f'ds_read_b64 {P(R,2)}, {P(vYL)} offset:{loff}\ns_waitcnt lgkmcnt(0)')
        a(f'v_xor_b32 {P(R)}, {P(R)}, {P(vT8)}\nv_xor_b32 {P(R+1)}, {P(R+1)}, {P(vT8)}\nv_or_b32 {P(R+2)}, {P(R)}, {P(R+1)}\nv_and_b32 {P(R+2)}, 0xff, {P(R+2)}\nv_cmp_ne_u32 vcc, 0, {P(R+2)}')
        a(f's_cbranch_vccz {ok}')
        self.spin_tail(lp, code, sleep=1)
        a.label(ok)
        a(f's_not_b64 exec, {S2(sMaskA)}')
        if goff: a(f'v_add_u32 {P(R+3)}, {goff}, {P(vYa)}')
        addr = R + 3 if goff else vYa
        lp = self.lab('cgr'); ok = self.lab('ok')
        self.spin_init()
        a.label(lp)
        a(f'global_load_dwordx2 {P(R,2)}, {P(addr)}, {S2(sWS)} sc1')
        if abort:
            vZ, fl, vT, tmp, lab = abort
            a(f'ds_read_b32 {P(tmp)}, {P(vZ)} offset:{fl}\ns_waitcnt lgkmcnt(0)\nv_cmp_eq_u32 vcc, {P(tmp)}, {P(vT)}\ns_cbranch_vccnz {lab}')
        a('s_waitcnt vmcnt(0)')
        a(f'v_xor_b32 {P(R)}, {P(R)}, {P(vT8)}\nv_xor_b32 {P(R+1)}, {P(R+1)}, {P(vT8)}\nv_or_b32 {P(R+2)}, {P(R)}, {P(R+1)}\nv_and_b32 {P(R+2)}, 0xff, {P(R+2)}\nv_cmp_ne_u32 vcc, 0, {P(R+2)}')
        a(f's_cbranch_vccz {ok}')
        self.spin_tail(lp, code + 1)
        a.label(ok)
        a('s_mov_b64 exec, -1')
        for s in (2, 4, 8):
            for r in (R, R + 1):
                a(f'v_add_f32_dpp {P(r)}, {P(r)}, {P(r)} row_ror:{s} row_mask:0xf bank_mask:0xf')

    def resid_publish(self, R, vX0, vX1, vXa, region, vT16, t0, t1, t2):
        a = self.a
        a(f'v_add_f32 {P(R)}, {P(R)}, {P(vX0)}\nv_add_f32 {P(R+1)}, {P(R+1)}, {P(vX1)}\nv_cvt_pk_bf16_f32 {P(t2)}, {P(R)}, {P(R+1)}')
        a(f'v_add_u32 {P(R+3)}, {region}, {P(vXa)}')
        a(f'v_lshl_or_b32 {P(R)}, {P(t2)}, 16, {P(vT16)}\nv_and_or_b32 {P(R+1)}, {P(t2)}, s{sHi}, {P(vT16)}')
        a(f's_mov_b64 exec, {S2(sMaskB)}')
        self.publish(f'global_store_dwordx2 {P(R+3)}, {P(R,2)}, {S2(sWS)}')
        a('s_mov_b64 exec, -1')
        a(f'v_lshlrev_b32 {P(vX0)}, 16, {P(t2)}\nv_and_b32 {P(vX1)}, s{sHi}, {P(t2)}')

    def build_D(self):
        a = self.a
        vl = 1
        vTr, vTr13, vTr2 = 2, 3, 4
        vAG, vPub, vYa, vYL, vHa, vHp = 5, 6, 7, 8, 9, 10
        vT32, vT16, vT8, vZ, vOne = 11, 12, 13, 14, 15
        vQw, vPr, vMr, vMLa, vMLp, vOPa, vOp = 16, 17, 18, 19, 20, 21, 22
        t0, t1, t2, t3, t4 = 24, 25, 26, 27, 28
        vDum = 30
        WQ, WO, W13, W2 = 32, 48, 64, 80
        csq, cs13 = 88, 89
        XP = 92; R = 96
        ACC = 108
        y, s1, s2 = 124, 125, 126
        Gr = 128
        ONE4 = 132
        Pa = 136; M4 = 152; LL = 156
        Ga, Gb = 172, 176
        wa, wb = 180, 181
        Ra, Rb = 184, 188
        G, J, W = f's{sG}', f's{sJ}', f's{sWL}'
        a.label('L_D', keep=False)
        self.stamp('D', 'start', once=True)
        a('s_waitcnt lgkmcnt(0)')
        a(f's_load_dword s{sE}, {S2(sWS)}, {WS_EPOCH}')
        a(f'v_lshlrev_b32 {P(t0)}, 4, {P(vl)}\nglobal_load_dwordx4 {P(XP,4)}, {P(t0)}, {S2(sX)}')
        lx = self.lab('d2');
        a(f's_cmp_lg_u32 {W}, 2\ns_cbranch_scc1 {lx}')
        a(f's_lshl_b32 s{sA}, {G}, 11\ns_and_b32 s{sB}, {J}, 15\ns_lshl_b32 s{sB}, s{sB}, 7\ns_add_u32 s{sA}, s{sA}, s{sB}\nv_lshlrev_b32 {P(t0)}, 14, {P(vl)}\nv_add_u32 {P(t0)}, s{sA}, {P(t0)}')
        a(f's_mov_b64 exec, 63\nglobal_load_dword {P(vDum)}, {P(t0)}, {S2(sWS)} sc1\ns_mov_b64 exec, -1')
        a.label(lx)
        lx = self.lab('d0')
        a(f's_cmp_lg_u32 {W}, 0\ns_cbranch_scc1 {lx}')
        a(f's_getpc_b64 {S2(sTmp2)}')
        a.label('L_pc')
        a(f's_sub_u32 s{sTmp2}, s{sTmp2}, L_pc-{KN}\ns_subb_u32 s{sTmp2+1}, s{sTmp2+1}, 0')
        a(f's_and_b32 s{sA}, {J}, 1\ns_lshl_b32 s{sA}, s{sA}, 13\nv_lshlrev_b32 {P(t0)}, 6, {P(vl)}\nv_add_u32 {P(t0)}, s{sA}, {P(t0)}\nv_add_u32 {P(t1)}, 4096, {P(t0)}')
        a(f's_mov_b32 s{sA}, L_end-{KN}\nv_min_u32 {P(t0)}, s{sA}, {P(t0)}\nv_min_u32 {P(t1)}, s{sA}, {P(t1)}')
        a(f'global_load_dword {P(vDum)}, {P(t0)}, {S2(sTmp2)}\nglobal_load_dword {P(vDum)}, {P(t1)}, {S2(sTmp2)}')
        a.label(lx)
        a(f'v_lshrrev_b32 {P(t0)}, 4, {P(vl)}\nv_and_b32 {P(t1)}, 3, {P(vl)}\nv_and_b32 {P(t2)}, 15, {P(vl)}\nv_lshrrev_b32 {P(t2)}, 2, {P(t2)}')
        a(f's_lshl_b32 s{sA}, {W}, 3')
        a(f'v_lshlrev_b32 {P(t3)}, 12, {P(t0)}\nv_lshl_add_u32 {P(t3)}, {P(t1)}, 10, {P(t3)}\nv_lshl_add_u32 {P(t3)}, {P(t2)}, 5, {P(t3)}\nv_add_u32 {P(vTr)}, s{sA}, {P(t3)}')
        a(f'v_lshlrev_b32 {P(t3)}, 11, {P(t0)}\nv_lshl_add_u32 {P(t3)}, {P(t1)}, 9, {P(t3)}')
        a(f'v_lshl_add_u32 {P(t4)}, {P(t2)}, 5, {P(t3)}\nv_add_u32 {P(vTr2)}, s{sA}, {P(t4)}')
        a(f's_lshr_b32 s{sB}, {W}, 1\ns_lshl_b32 s{sB}, s{sB}, 3\nv_lshl_add_u32 {P(t4)}, {P(t2)}, 4, {P(t3)}\nv_add_u32 {P(vTr13)}, s{sB}, {P(t4)}')
        a(f's_lshl_b32 s{sA}, {G}, 11\nv_lshlrev_b32 {P(t3)}, 5, {P(vl)}\nv_add_u32 {P(vAG)}, s{sA}, {P(t3)}')
        a(f's_lshl_b32 s{sB}, {J}, 6\ns_add_u32 s{sB}, s{sB}, s{sA}\ns_lshl_b32 s{sC}, {W}, 4\ns_add_u32 s{sC}, s{sC}, s{sB}\nv_mov_b32 {P(vPub)}, s{sC}')
        a(f's_add_u32 s{sC}, s{sA}, {WS_H}\nv_lshlrev_b32 {P(t3)}, 4, {P(vl)}\nv_add_u32 {P(vHa)}, s{sC}, {P(t3)}')
        a(f's_lshl_b32 s{sD}, {J}, 5\ns_add_u32 s{sC}, s{sC}, s{sD}\ns_lshl_b32 s{sD}, {W}, 3\ns_add_u32 s{sC}, s{sC}, s{sD}\nv_mov_b32 {P(vHp)}, s{sC}')
        a(f's_lshl_b32 s{sC}, {J}, 3\ns_add_u32 s{sC}, s{sC}, {G}\ns_lshr_b32 s{sD}, s{sC}, 6\ns_lshl_b32 s{sD}, s{sD}, 14\ns_and_b32 s{sC}, s{sC}, 63\ns_lshl_b32 s{sC}, s{sC}, 7\ns_add_u32 s{sC}, s{sC}, s{sD}')
        a(f's_lshl_b32 s{sD}, {W}, 4\ns_add_u32 s{sC}, s{sC}, s{sD}\ns_add_u32 s{sC}, s{sC}, {WS_Y}\nv_mov_b32 {P(vYa)}, s{sC}')
        a(f's_add_u32 s{sD}, s{sD}, {L_YZ}\nv_mov_b32 {P(vYL)}, s{sD}')
        a(f'v_mul_u32_u24 {P(t3)}, 320, {P(t0)}\nv_and_b32 {P(t4)}, 15, {P(vl)}\nv_lshl_add_u32 {P(t3)}, {P(t4)}, 4, {P(t3)}\nv_add_u32 {P(vQw)}, {L_Q}, {P(t3)}')
        a(f'v_lshlrev_b32 {P(t3)}, 6, {P(t0)}\nv_lshl_add_u32 {P(t3)}, {P(t1)}, 4, {P(t3)}\nv_add_u32 {P(vPr)}, {L_P}, {P(t3)}')
        a(f'v_lshlrev_b32 {P(t3)}, 4, {P(t1)}\nv_add_u32 {P(vMr)}, {L_M}, {P(t3)}')
        a(f's_add_u32 s{sC}, s{sA}, {WS_ML}\nv_lshlrev_b32 {P(t4)}, 4, {P(vl)}\nv_add_u32 {P(vMLa)}, s{sC}, {P(t4)}')
        a(f's_add_u32 s{sC}, s{sB}, {WS_ML}\nv_add_u32 {P(vMLp)}, s{sC}, {P(t3)}')
        a(f's_lshl_b32 s{sC}, {G}, 16\ns_lshl_b32 s{sD}, {J}, 11\ns_add_u32 s{sC}, s{sC}, s{sD}\ns_add_u32 s{sC}, s{sC}, {WS_OP}\nv_add_u32 {P(vOPa)}, s{sC}, {P(t4)}')
        a(f's_add_u32 s{sC}, s{sB}, {WS_O}\nv_lshlrev_b32 {P(t3)}, 4, {P(t0)}\nv_add_u32 {P(vOp)}, s{sC}, {P(t3)}')
        a(f'v_mov_b32 {P(vZ)}, 0\nv_mov_b32 {P(vOne)}, 0x3f803f80')
        for i in range(4): a(f'v_mov_b32 {P(ONE4+i)}, {P(vOne)}')
        a(f's_mov_b32 s{sHi}, 0xffff0000\ns_mov_b32 s{sPerm}, 0x07060302\ns_mov_b32 s{sF00}, 0xffffff00')
        a('s_waitcnt lgkmcnt(0)')
        a(f's_add_u32 s{sT}, s{sE}, 1\nv_mov_b32 {P(vT32)}, s{sT}\nv_and_b32 {P(vT16)}, 0xffff, {P(vT32)}\nv_and_b32 {P(vT8)}, 0xff, {P(vT32)}')
        lx = self.lab('d3')
        a(f's_cmp_lg_u32 {W}, 3\ns_cbranch_scc1 {lx}')
        a(f'v_lshlrev_b32 {P(t0)}, 2, {P(vl)}\nv_mov_b32 {P(t1)}, s{sE}\nds_write_b32 {P(t0)}, {P(t1)} offset:{L_YZ}')
        a(f's_mov_b64 exec, 0xfff\nds_write_b32 {P(t0)}, {P(t1)} offset:{L_YZ + 256}\ns_mov_b64 exec, -1\ns_waitcnt lgkmcnt(0)')
        a.label(lx)
        lx = self.lab('d1')
        a(f's_cmp_lg_u32 {W}, 1\ns_cbranch_scc1 {lx}')
        a(f's_getreg_b32 s{sD}, hwreg(HW_REG_XCC_ID, 0, 4)')
        a(f's_lshl_b32 s{sA}, {G}, 5\ns_add_u32 s{sB}, s{sA}, {J}\ns_lshl_b32 s{sB}, s{sB}, 7\ns_add_u32 s{sB}, s{sB}, {WS_HS}\nv_mov_b32 {P(t0)}, s{sB}')
        a(f'v_mov_b32 {P(Gr)}, s{sD}\nv_mov_b32 {P(Gr+1)}, {P(vT32)}\nv_mov_b32 {P(Gr+2)}, {P(vT32)}\nv_mov_b32 {P(Gr+3)}, {P(vT32)}')
        a(f's_mov_b64 exec, 1\nglobal_store_dwordx4 {P(t0)}, {P(Gr,4)}, {S2(sWS)} sc1')
        a(f's_mov_b32 exec_lo, -1\ns_mov_b32 exec_hi, 0')
        a(f's_lshl_b32 s{sA}, s{sA}, 7\ns_add_u32 s{sA}, s{sA}, {WS_HS}\nv_lshlrev_b32 {P(t0)}, 7, {P(vl)}\nv_add_u32 {P(t0)}, s{sA}, {P(t0)}')
        lp = self.lab('hs'); ok = self.lab('ok')
        self.spin_init()
        a.label(lp)
        a(f'global_load_dwordx4 {P(R,4)}, {P(t0)}, {S2(sWS)} sc1\ns_waitcnt vmcnt(0)')
        a(f'v_bitop3_b32 {P(t1)}, {P(R+1)}, {P(R+2)}, {P(vT32)} bitop3:0x7e\nv_cmp_ne_u32 vcc, 0, {P(t1)}\ns_cbranch_vccz {ok}')
        self.spin_tail(lp, 1, sleep=2)
        a.label(ok)
        a(f'v_cmp_ne_u32 vcc, s{sD}, {P(R)}\ns_cmp_lg_u64 vcc, 0\ns_cselect_b32 s{sA}, 1, 0\nv_mov_b32 {P(t1)}, s{sA}')
        a(f's_mov_b64 exec, 1\nds_write_b32 {P(vZ)}, {P(t1)} offset:{F_MODE}\ns_mov_b64 exec, -1\ns_waitcnt lgkmcnt(0)')
        a.label(lx)
        a('s_barrier')
        a(f'ds_read_b32 {P(t0)}, {P(vZ)} offset:{F_MODE}')
        for p in range(2):
            for i in range(4):
                a(f'ds_read_b64_tr_b16 {P(WQ+2*(4*p+i),2)}, {P(vTr)} offset:{L_WQ + 256*i + 128*p}')
        a(f's_waitcnt lgkmcnt(0)\nv_readfirstlane_b32 s{sMode}, {P(t0)}')
        self.colsum(WQ, csq, ACC, vOne, t0)
        a('s_waitcnt vmcnt(0)')
        a.label('L_D_loop')
        self.ln_gemv(XP, WQ, csq, ACC, y, s1, s2, vOne, t0, t1, t2, t3)
        a(f'v_cvt_pk_bf16_f32 {P(t0)}, {P(y)}, {P(y)}\nv_and_or_b32 {P(Gr)}, {P(t0)}, s{sHi}, {P(vT16)}')
        self.quad_gather(Gr)
        a(f'v_add_u32 {P(t1)}, {WS_Q}, {P(vPub)}\ns_mov_b64 exec, 1')
        self.publish(f'global_store_dwordx4 {P(t1)}, {P(Gr,4)}, {S2(sWS)}')
        a('s_mov_b64 exec, -1')
        self.stamp('D', 'qpub')
        lx = self.lab('pt')
        a(f's_cmp_lg_u32 s{sPass}, 0\ns_cbranch_scc1 {lx}')
        l3 = self.lab('pt3')
        a(f's_cmp_lg_u32 {W}, 2\ns_cbranch_scc1 {l3}')
        a(f's_lshl_b32 s{sC}, {G}, 16\ns_lshl_b32 s{sD}, {J}, 11\ns_add_u32 s{sC}, s{sC}, s{sD}\ns_add_u32 s{sC}, s{sC}, {WS_OP}\nv_lshlrev_b32 {P(t0)}, 7, {P(vl)}\nv_add_u32 {P(t0)}, s{sC}, {P(t0)}')
        a(f's_mov_b64 exec, 0xffff\nglobal_load_dword {P(vDum)}, {P(t0)}, {S2(sWS)} sc1\ns_mov_b64 exec, -1')
        a.label(l3)
        a(f's_cmp_lg_u32 {W}, 3\ns_cbranch_scc1 {lx}')
        a(f'v_and_b32 {P(t0)}, 7, {P(vl)}\ns_lshl_b32 s{sC}, {J}, 3\nv_add_u32 {P(t0)}, s{sC}, {P(t0)}\nv_lshrrev_b32 {P(t1)}, 6, {P(t0)}\nv_lshlrev_b32 {P(t1)}, 14, {P(t1)}\nv_and_b32 {P(t0)}, 63, {P(t0)}\nv_lshl_add_u32 {P(t0)}, {P(t0)}, 7, {P(t1)}')
        a(f'v_lshrrev_b32 {P(t1)}, 3, {P(vl)}\nv_and_b32 {P(t1)}, 1, {P(t1)}\nv_lshl_add_u32 {P(t0)}, {P(t1)}, 13, {P(t0)}\nv_lshrrev_b32 {P(t1)}, 4, {P(vl)}\nv_lshl_add_u32 {P(t0)}, {P(t1)}, 16, {P(t0)}\nv_add_u32 {P(t0)}, {WS_Y}, {P(t0)}')
        a(f'global_load_dword {P(vDum)}, {P(t0)}, {S2(sWS)} sc1')
        a.label(lx)
        lx = self.lab('qg')
        a(f's_cmp_lg_u32 {W}, 0\ns_cbranch_scc1 {lx}')
        a(f'v_add_u32 {P(t4)}, {WS_Q}, {P(vAG)}')
        self.gather16(R, t4, vT16, 2, 'q')
        self.pack8(Gr, R)
        a(f'ds_write_b128 {P(vQw)}, {P(Gr,4)}\ns_waitcnt lgkmcnt(0)')
        a.label(lx)
        a('s_barrier')
        a('s_barrier')
        ld123 = self.lab('d123'); lo = self.lab('dO')
        a(f's_cmp_lg_u32 {W}, 0\ns_cbranch_scc1 {ld123}')
        for gq in range(4): a(f'ds_read_b128 {P(Pa+4*gq,4)}, {P(vPr)} offset:{256*gq}')
        a(f'ds_read_b128 {P(M4,4)}, {P(vMr)}\ns_waitcnt lgkmcnt(0)')
        for gq in range(4):
            a(f'v_mfma_f32_16x16x32_bf16 {P(LL+4*gq,4)}, {P(ONE4,4)}, {P(Pa+4*gq,4)}, 0')
        a(f'v_max3_f32 {P(t0)}, {P(M4)}, {P(M4+1)}, {P(M4+2)}\nv_max_f32 {P(Gr)}, {P(t0)}, {P(M4+3)}')
        for i in range(4): a(f'v_sub_f32 {P(M4+i)}, {P(M4+i)}, {P(Gr)}')
        for i in range(4): a(f'v_exp_f32 {P(M4+i)}, {P(M4+i)}')
        a(f'v_mul_f32 {P(Gr+1)}, {P(M4)}, {P(LL)}')
        for i in range(1, 4): a(f'v_fmac_f32 {P(Gr+1)}, {P(M4+i)}, {P(LL+4*i)}')
        a(f'v_mov_b32 {P(Gr+2)}, {P(vT32)}\nv_mov_b32 {P(Gr+3)}, {P(vT32)}\ns_mov_b64 exec, 15')
        self.publish(f'global_store_dwordx4 {P(vMLp)}, {P(Gr,4)}, {S2(sWS)}')
        a('s_mov_b64 exec, -1')
        lp = self.lab('ml'); ok = self.lab('ok')
        self.spin_init()
        a.label(lp)
        a(f'global_load_dwordx4 {P(Ga,4)}, {P(vMLa)}, {S2(sWS)} sc1\nglobal_load_dwordx4 {P(Gb,4)}, {P(vMLa)}, {S2(sWS)} offset:1024 sc1\ns_waitcnt vmcnt(0)')
        a(f'v_bitop3_b32 {P(t0)}, {P(Ga+2)}, {P(Gb+2)}, {P(vT32)} bitop3:0x7e\nv_cmp_ne_u32 vcc, 0, {P(t0)}\ns_cbranch_vccz {ok}')
        self.spin_tail(lp, 3)
        a.label(ok)
        self.stamp('D', 'mlgot')
        a(f'v_max_f32 {P(t0)}, {P(Ga)}, {P(Gb)}')
        for i in self.allred('v_max_f32', t0, t1): a(i)
        a(f'v_sub_f32 {P(wa)}, {P(Ga)}, {P(t0)}\nv_sub_f32 {P(wb)}, {P(Gb)}, {P(t0)}\nv_exp_f32 {P(wa)}, {P(wa)}\nv_exp_f32 {P(wb)}, {P(wb)}')
        a(f'v_mul_f32 {P(t0)}, {P(wa)}, {P(Ga+1)}\nv_fmac_f32 {P(t0)}, {P(wb)}, {P(Gb+1)}')
        for i in self.allred('v_add_f32', t0, t1): a(i)
        a(f'v_rcp_f32 {P(t0)}, {P(t0)}\nv_mul_f32 {P(wa)}, {P(wa)}, {P(t0)}\nv_mul_f32 {P(wb)}, {P(wb)}, {P(t0)}')
        lp = self.lab('op'); ok = self.lab('ok')
        self.spin_init()
        a.label(lp)
        a(f'global_load_dwordx4 {P(Ra,4)}, {P(vOPa)}, {S2(sWS)} sc1\nglobal_load_dwordx4 {P(Rb,4)}, {P(vOPa)}, {S2(sWS)} offset:1024 sc1\ns_waitcnt vmcnt(0)')
        for i in range(8): a(f'v_xor_b32 {P(Ra+i)}, {P(Ra+i)}, {P(vT8)}')
        a(f'v_or3_b32 {P(t0)}, {P(Ra)}, {P(Ra+1)}, {P(Ra+2)}\nv_or3_b32 {P(t1)}, {P(Ra+3)}, {P(Rb)}, {P(Rb+1)}\nv_or3_b32 {P(t0)}, {P(t0)}, {P(Rb+2)}, {P(Rb+3)}\nv_or_b32 {P(t0)}, {P(t0)}, {P(t1)}\nv_and_b32 {P(t0)}, 0xff, {P(t0)}\nv_cmp_ne_u32 vcc, 0, {P(t0)}')
        a(f's_cbranch_vccz {ok}')
        self.spin_tail(lp, 4)
        a.label(ok)
        self.stamp('D', 'opgot')
        for i in range(4): a(f'v_mul_f32 {P(Ra+i)}, {P(wa)}, {P(Ra+i)}')
        for i in range(4): a(f'v_fmac_f32 {P(Ra+i)}, {P(wb)}, {P(Rb+i)}')
        for s in (4, 8):
            for i in range(4): a(f'v_add_f32_dpp {P(Ra+i)}, {P(Ra+i)}, {P(Ra+i)} row_ror:{s} row_mask:0xf bank_mask:0xf')
        a(f'v_permlane16_swap_b32 {P(Ra)}, {P(Ra+1)}\nv_permlane16_swap_b32 {P(Ra+2)}, {P(Ra+3)}')
        a(f'v_add_f32 {P(Ra)}, {P(Ra)}, {P(Ra+1)}\nv_add_f32 {P(Ra+2)}, {P(Ra+2)}, {P(Ra+3)}')
        a(f'v_permlane32_swap_b32 {P(Ra)}, {P(Ra+2)}\nv_add_f32 {P(Ra)}, {P(Ra)}, {P(Ra+2)}')
        a(f'v_cvt_pk_bf16_f32 {P(t0)}, {P(Ra)}, {P(Ra)}\nv_and_or_b32 {P(Gr)}, {P(t0)}, s{sHi}, {P(vT16)}')
        self.quad_gather(Gr)
        a(f's_mov_b32 exec_lo, 0x00010001\ns_mov_b32 exec_hi, 0x00010001')
        self.publish(f'global_store_dwordx4 {P(vOp)}, {P(Gr,4)}, {S2(sWS)}')
        a('s_mov_b64 exec, -1')
        self.set_flag(vZ, F_O, vT32)
        self.stamp('D', 'opub')
        a.label(ld123)
        lx = self.lab('wo')
        a(f's_cmp_lg_u32 s{sPass}, 0\ns_cbranch_scc1 {lx}')
        self.wait_flag(vZ, F_WO, 4, R, vT32, 5)
        for p in range(2):
            for i in range(4):
                a(f'ds_read_b64_tr_b16 {P(WO+2*(4*p+i),2)}, {P(vTr)} offset:{L_WO + 256*i + 128*p}')
        a('s_waitcnt lgkmcnt(0)')
        a.label(lx)
        self.wait_flag(vZ, F_O, 1, R, vT32, 6)
        a(f'v_add_u32 {P(t4)}, {WS_O}, {P(vAG)}')
        self.gather16(R, t4, vT16, 7, 'o')
        self.pack8(XP, R)
        self.gemv8(XP, WO, ACC, y, t0)
        a(f'v_and_or_b32 {P(Gr)}, {P(y)}, s{sF00}, {P(vT8)}')
        self.quad_gather(Gr)
        self.cross_publish(Gr, vYa, 0, vYL, 0, t1)
        self.stamp('D', 'ypub')
        lx = self.lab('w13')
        a(f's_cmp_lg_u32 s{sPass}, 0\ns_cbranch_scc1 {lx}')
        self.wait_flag(vZ, F_W13W2, 4, R, vT32, 8)
        lodd = self.lab('odd'); ljn = self.lab('jn')
        a(f's_mov_b32 vcc_lo, 0x33333333\ns_mov_b32 vcc_hi, 0x33333333')
        a(f's_bitcmp1_b32 {W}, 0\ns_cbranch_scc1 {lodd}')
        for par in range(2):
            if par == 1: a.label(lodd, keep=False)
            qp = '[0,1,0,1]' if par == 0 else '[2,3,2,3]'
            for p in range(2):
                for i in range(4):
                    off = 128*i + 64*p
                    a(f'ds_read_b64_tr_b16 {P(R,2)}, {P(vTr13)} offset:{L_W1 + off}\nds_read_b64_tr_b16 {P(R+2,2)}, {P(vTr13)} offset:{L_W3 + off}\ns_waitcnt lgkmcnt(0)')
                    for h in range(2):
                        d = W13 + 2*(4*p+i) + h
                        a(f'v_mov_b32_dpp {P(R+4+h)}, {P(R+h)} quad_perm:{qp} row_mask:0xf bank_mask:0xf')
                    for h in range(2):
                        d = W13 + 2*(4*p+i) + h
                        a(f'v_cndmask_b32_dpp {P(d)}, {P(R+2+h)}, {P(R+4+h)}, vcc quad_perm:{qp} row_mask:0xf bank_mask:0xf')
            if par == 0: a(f's_branch {ljn}')
        a.label(ljn)
        for i in range(4):
            a(f'ds_read_b64_tr_b16 {P(W2+2*i,2)}, {P(vTr2)} offset:{L_W2 + 128*i}')
        a('s_waitcnt lgkmcnt(0)')
        self.colsum(W13, cs13, ACC, vOne, t0)
        a.label(lx)
        self.wait_flag(vZ, F_X1, 1, R, vT32, 9)
        a(f'v_add_u32 {P(t4)}, {WS_X1}, {P(vAG)}')
        self.gather16(R, t4, vT16, 10, 'x1')
        self.stamp('D', 'x1got')
        self.pack8(XP, R)
        lx = self.lab('noffn')
        a(f's_cmp_ge_u32 {J}, 28\ns_cbranch_scc1 {lx}')
        self.ln_gemv(XP, W13, cs13, ACC, y, s1, s2, vOne, t0, t1, t2, t3)
        a(f'v_cvt_pk_bf16_f32 {P(t0)}, {P(y)}, {P(y)}\nv_and_b32 {P(t0)}, s{sHi}, {P(t0)}')
        a(f'v_mul_f32 {P(t1)}, 0xbfb8aa3b, {P(t0)}\nv_exp_f32 {P(t1)}, {P(t1)}\nv_add_f32 {P(t1)}, 1.0, {P(t1)}\nv_rcp_f32 {P(t1)}, {P(t1)}\nv_mul_f32 {P(t1)}, {P(t0)}, {P(t1)}')
        a(f'v_cvt_pk_bf16_f32 {P(t1)}, {P(t1)}, {P(t1)}\nv_and_b32 {P(t1)}, s{sHi}, {P(t1)}')
        a(f'v_mul_f32_dpp {P(t1)}, {P(t0)}, {P(t1)} quad_perm:[2,3,2,3] row_mask:0xf bank_mask:0xf')
        a(f'v_cvt_pk_bf16_f32 {P(t1)}, {P(t1)}, {P(t1)}\nv_and_or_b32 {P(Gr)}, {P(t1)}, s{sHi}, {P(vT16)}')
        a(f'v_mov_b32_dpp {P(Gr+1)}, {P(Gr)} quad_perm:[1,1,1,1] row_mask:0xf bank_mask:0xf')
        a('s_mov_b64 exec, 1')
        self.publish(f'global_store_dwordx2 {P(vHp)}, {P(Gr,2)}, {S2(sWS)}')
        a('s_mov_b64 exec, -1')
        a.label(lx)
        lp = self.lab('h'); ok = self.lab('ok')
        a(f's_mov_b32 exec_lo, -1\ns_mov_b32 exec_hi, 0x00ffffff')
        self.spin_init()
        a.label(lp)
        a(f'global_load_dwordx4 {P(R,4)}, {P(vHa)}, {S2(sWS)} sc1\ns_waitcnt vmcnt(0)')
        a(f'v_bitop3_b32 {P(t0)}, {P(R)}, {P(R+1)}, {P(vT16)} bitop3:0x7e\nv_bitop3_b32 {P(t1)}, {P(R+2)}, {P(R+3)}, {P(vT16)} bitop3:0x7e\nv_or_b32 {P(t0)}, {P(t0)}, {P(t1)}\nv_cmp_ne_u16 vcc, 0, {P(t0)}')
        a(f's_cbranch_vccz {ok}')
        self.spin_tail(lp, 11)
        a.label(ok)
        self.stamp('D', 'hgot')
        a(f's_mov_b64 exec, -1\nv_mov_b32 {P(XP)}, 0\nv_mov_b32 {P(XP+1)}, 0\ns_mov_b32 exec_hi, 0x00ffffff')
        a(f'v_perm_b32 {P(XP)}, {P(R+1)}, {P(R)}, s{sPerm}\nv_perm_b32 {P(XP+1)}, {P(R+3)}, {P(R+2)}, s{sPerm}\ns_mov_b64 exec, -1')
        for i in range(4):
            a(f'v_mfma_f32_4x4x4_16b_bf16 {P(ACC+4*i,4)}, {P(XP,2)}, {P(W2+2*i,2)}, 0')
        a(f'v_add_f32 {P(y)}, {P(ACC)}, {P(ACC+5)}\nv_add_f32 {P(t0)}, {P(ACC+10)}, {P(ACC+15)}\nv_add_f32 {P(y)}, {P(y)}, {P(t0)}')
        for i in self.allred('v_add_f32', y, t0): a(i)
        a(f'v_and_or_b32 {P(Gr)}, {P(y)}, s{sF00}, {P(vT8)}')
        self.quad_gather(Gr)
        self.cross_publish(Gr, vYa, 0x10000, vYL, 64, t1)
        self.stamp('D', 'zpub')
        if self.onepass: a('s_branch L_D_end')
        a(f's_cmp_lg_u32 s{sPass}, 0\ns_cbranch_scc1 L_D_end')
        self.wait_flag(vZ, F_X2, 1, R, vT32, 12)
        a(f'v_add_u32 {P(t4)}, {WS_X2}, {P(vAG)}')
        self.gather16(R, t4, vT16, 13, 'x2')
        self.pack8(XP, R)
        a(f's_mov_b32 s{sPass}, 1\ns_add_u32 s{sT}, s{sT}, 1\nv_mov_b32 {P(vT32)}, s{sT}\nv_and_b32 {P(vT16)}, 0xffff, {P(vT32)}\nv_and_b32 {P(vT8)}, 0xff, {P(vT32)}')
        a(f'v_add_u32 {P(vYa)}, 0x20000, {P(vYa)}\nv_add_u32 {P(vYL)}, 128, {P(vYL)}')
        a('s_branch L_D_loop')
        a.label('L_D_end', keep=False)
        self.dump_stamps()
        a('s_endpgm')

    def quad_gather(self, Gr):
        for i in range(1, 4):
            self.a(f'v_mov_b32_dpp {P(Gr+i)}, {P(Gr)} quad_perm:[{i},{i},{i},{i}] row_mask:0xf bank_mask:0xf')
    def cross_publish(self, Gr, vYa, goff, vYL, loff, t):
        a = self.a
        a(f'v_add_u32 {P(t)}, {goff}, {P(vYa)}\nv_add_u32 {P(t+1)}, {goff + 8192}, {P(vYa)}\ns_mov_b64 exec, 1')
        a(f'global_store_dwordx4 {P(t)}, {P(Gr,4)}, {S2(sWS)} sc1\nglobal_store_dwordx4 {P(t+1)}, {P(Gr,4)}, {S2(sWS)} sc1')
        a(f'ds_write_b128 {P(vYL)}, {P(Gr,4)} offset:{loff}\ns_mov_b64 exec, -1')
    def mfma8(self, XP, Wt, ACC):
        L = []
        for p in range(2):
            for i in range(4):
                c = '0' if p == 0 else P(ACC+4*i, 4)
                L.append(f'v_mfma_f32_4x4x4_16b_bf16 {P(ACC+4*i,4)}, {P(XP+2*p,2)}, {P(Wt+2*(4*p+i),2)}, {c}')
        return L
    def gemv8(self, XP, Wt, ACC, y, t):
        a = self.a
        for m in self.mfma8(XP, Wt, ACC): a(m)
        a(f'v_add_f32 {P(y)}, {P(ACC)}, {P(ACC+5)}\nv_add_f32 {P(t)}, {P(ACC+10)}, {P(ACC+15)}\nv_add_f32 {P(y)}, {P(y)}, {P(t)}')
        for i in self.allred('v_add_f32', y, t): a(i)
    def colsum(self, Wt, cs, ACC, vOne, t):
        a = self.a
        a(f'v_mov_b32 {P(ACC+8)}, {P(vOne)}\nv_mov_b32 {P(ACC+9)}, {P(vOne)}')
        for k in range(8):
            c = '0' if k < 2 else P(ACC + 4*(k & 1), 4)
            a(f'v_mfma_f32_4x4x4_16b_bf16 {P(ACC+4*(k&1),4)}, {P(ACC+8,2)}, {P(Wt+2*k,2)}, {c}')
        a(f'v_add_f32 {P(cs)}, {P(ACC)}, {P(ACC+4)}')
        for i in self.allred('v_add_f32', cs, t): a(i)
    def ln_gemv(self, XP, Wt, cs, ACC, y, s1, s2, vOne, t0, t1, t2, t3):
        a = self.a
        dots = []
        for i in range(4):
            dots.append(f'v_dot2_f32_bf16 {P(s1)}, {P(XP+i)}, {P(vOne)}, ' + ('0' if i == 0 else P(s1)))
            dots.append(f'v_dot2_f32_bf16 {P(s2)}, {P(XP+i)}, {P(XP+i)}, ' + ('0' if i == 0 else P(s2)))
        self.interleave(self.mfma8(XP, Wt, ACC), dots)
        main = [f'v_add_f32 {P(y)}, {P(ACC)}, {P(ACC+5)}', f'v_add_f32 {P(t0)}, {P(ACC+10)}, {P(ACC+15)}', f'v_add_f32 {P(y)}, {P(y)}, {P(t0)}'] + self.allred('v_add_f32', y, t0)
        st = [f'v_permlane32_swap_b32 {P(s1)}, {P(s2)}', f'v_add_f32 {P(s1)}, {P(s1)}, {P(s2)}']
        st += [f'v_add_f32_dpp {P(s1)}, {P(s1)}, {P(s1)} row_ror:{s} row_mask:0xf bank_mask:0xf' for s in (1, 2, 4, 8)]
        st += [f'v_mov_b32 {P(t1)}, {P(s1)}', f'v_permlane16_swap_b32 {P(s1)}, {P(t1)}', f'v_add_f32 {P(s1)}, {P(s1)}, {P(t1)}']
        st += [f'v_mov_b32 {P(s2)}, {P(s1)}', f'v_permlane32_swap_b32 {P(s1)}, {P(s2)}']
        st += [f'v_mul_f32 {P(s1)}, 0x3b000000, {P(s1)}', f'v_mul_f32 {P(s2)}, 0x3b000000, {P(s2)}',
               f'v_fma_f32 {P(s2)}, -{P(s1)}, {P(s1)}, {P(s2)}', f'v_add_f32 {P(s2)}, 0x3727c5ac, {P(s2)}', f'v_rsq_f32 {P(s2)}, {P(s2)}']
        self.interleave(st, main)
        a(f'v_fma_f32 {P(y)}, -{P(s1)}, {P(cs)}, {P(y)}\nv_mul_f32 {P(y)}, {P(y)}, {P(s2)}')

HEADER = open(os.path.join(os.path.dirname(os.path.abspath(__file__)), 'header.txt')).read()
FOOTER = f'''.section .rodata,"a"
.p2align 6
.amdhsa_kernel {KN}
  .amdhsa_next_free_vgpr 256
  .amdhsa_next_free_sgpr 102
  .amdhsa_accum_offset 256
  .amdhsa_group_segment_fixed_size 0
  .amdhsa_kernarg_size 96
  .amdhsa_user_sgpr_count 2
  .amdhsa_user_sgpr_kernarg_segment_ptr 1
  .amdhsa_system_sgpr_workgroup_id_x 1
.end_amdhsa_kernel
'''
def generate(**kw):
    g = Gen(**kw)
    body = g.build()
    txt = HEADER + f'; @launch grid=(256,1,1) block=(512,1,1) lds={LDS_BYTES}\n' + body + FOOTER
    return txt, g

if __name__ == '__main__':
    import argparse
    ap = argparse.ArgumentParser()
    ap.add_argument('-o', default='cdna_kernels/' + NAME + '.s')
    ap.add_argument('--stamps', action='store_true'); ap.add_argument('--slow', action='store_true')
    ap.add_argument('--onepass', action='store_true'); ap.add_argument('--ntkv', action='store_true'); ap.add_argument('--ntw', action='store_true')
    args = ap.parse_args()
    txt, g = generate(stamps=args.stamps, force_slow=args.slow, nt_kv=args.ntkv, nt_w=args.ntw, onepass=args.onepass)
    open(args.o, 'w').write(txt)
    print('instructions', g.a.count, 'nops', g.a.nops, 'stamps', g.nstamp)
```

```python
import sys, os
from asmgen import Asm

NAME = 'interleave_layers__sliding_block_cached__glu_gated_swiglu__decode'
KN = NAME + '_kernel'

WS_Q, WS_ML, WS_O, WS_X1, WS_H, WS_X2 = 0x0000, 0x4000, 0x8000, 0xC000, 0x10000, 0x14000
WS_QB = 0x18000
WS_Y = 0x20000
WS_EPOCH = 0x60000
WS_OP = 0x80000
WS_STAMP = 0x200000
L_Q = 0; L_P = 1280; L_M = 2304; L_YZ = 2368; L_F = 2624
L_WQ, L_WO, L_W1, L_W3, L_W2, L_V, L_K = 4096, 20480, 36864, 45056, 53248, 61440, 94208
MS_WQ, MS_K, MS_V, MS_WO, MS_W13, MS_W2, F_X0, F_DONE = (L_F + 4*i for i in range(8))
F_PF = L_F + 32
F_O, F_X1, F_X2, F_MODE = L_F + 48, L_F + 56, L_F + 64, L_F + 68
F_Y, F_Z = L_F + 80, L_F + 96
LDS_BYTES = 126976
NA_POLL = 256
NWAVES = 9
SPIN = 1 << 17

C_SCALE = 0.08838834764831845 * 1.4426950408889634
import struct
def f2u(x): return struct.unpack('<I', struct.pack('<f', x))[0]

sX, sK, sV, sWQ, sWO, sW1, sW3, sW2, sOUT, sDBG, sWS = 4, 6, 8, 10, 12, 16, 18, 20, 22, 24, 26
sG, sJ, sW, sWL, sE, sT, sMode, sPass, sSpin = 28, 29, 30, 31, 32, 33, 34, 35, 44
sSRD = 36
sA, sB, sC, sD = 45, 46, 47, 48
sM0 = 49
sMaskA = 50
sMaskB = 52
sMaskC = 54
sHi = 56
sPerm = 57
sCs = 58
sF00 = 59
sTmp2 = 60
sTmpA = 62
sStamp0 = 64

def P(r, n=1):
    return 'v%d' % r if n == 1 else 'v[%d:%d]' % (r, r + n - 1)
def S2(r): return 's[%d:%d]' % (r, r + 1)

def make_plan(name, D1, D2):
    T = lambda t, a, b, d: [(t, i, d) for i in range(a, b)]
    def mix(x, y, k=1):
        out = []; x = list(x); y = list(y)
        while x or y:
            out += x[:k]; x = x[k:]
            out += y[:1]; y = y[1:]
        return out
    if name == 'seq':
        p = T('wq', 0, 16, 64) + T('k', 0, 32, D1) + T('v', 0, 32, D1) + T('wo', 0, 8, D1) + T('wo', 8, 16, D2) + T('w1', 0, 8, D2) + T('w3', 0, 8, D2) + T('w2', 0, 8, D2)
    elif name == 'deep':
        p = T('wq', 0, 16, 64) + T('k', 0, 16, 40) + T('k', 16, 32, 24) + T('v', 0, 32, D1) + T('wo', 0, 16, D1) + T('w1', 0, 8, D2) + T('w3', 0, 8, D2) + T('w2', 0, 8, D2)
    elif name == 'vlast':
        late = T('wo', 0, 16, D1) + T('w1', 0, 8, D1) + T('w3', 0, 8, D1) + T('w2', 0, 8, D1)
        p = T('wq', 0, 16, 64) + T('k', 0, 16, 40) + mix(T('k', 16, 32, D1) + T('v', 0, 24, D1), late, 1) + T('v', 24, 32, D1)
    elif name == 'wofirst':
        p = T('wq', 0, 16, 64) + T('k', 0, 16, 40) + mix(T('k', 16, 32, D1) + T('v', 0, 16, D1), T('wo', 0, 16, D1), 2) + T('v', 16, 32, D1) + T('w1', 0, 8, D2) + T('w3', 0, 8, D2) + T('w2', 0, 8, D2)
    else: raise ValueError(name)
    return p, 16

class Gen:
    def __init__(self, stamps=False, nt_kv=False, nt_w=False, force_slow=False, onepass=False, depth=16, depth2=8, plan='seq'):
        self.onepass = onepass; self.depth = depth; self.depth2 = depth2
        self.plan, self.nfirst = make_plan(plan, depth, depth2)
        self.a = Asm(); self.stamps = stamps; self.nlab = 0; self.deferred = []
        self.nt_kv = ' nt' if nt_kv else ''; self.nt_w = ' nt' if nt_w else ''
        self.force_slow = force_slow
        self.nstamp = {}
    def lab(self, p):
        self.nlab += 1; return 'L_%s_%d' % (p, self.nlab)
    def stamp(self, role, name, once=False, pro=False):
        if not self.stamps: return
        if self.stamps == 'min':
            if name not in ('start', 'end'): return
        elif name == 'end': pass
        elif name != 'start' and name != 'B1' and (self.stamps == 'pro') != pro: return
        lst = self.nstamp.setdefault(role, [])
        keys = [name + '0'] if once else [name + '0', name + '1']
        for k in keys:
            if k not in lst: lst.append(k)
        assert len(lst) <= 18, 'too many stamps'
        idx = [lst.index(k) for k in keys]
        r = lambda i: f's[{sStamp0+2*i}:{sStamp0+2*i+1}]'
        if once:
            self.a(f's_memrealtime {r(idx[0])}')
            return
        l1 = self.lab('st'); l2 = self.lab('st')
        self.a(f's_cmp_eq_u32 s{sPass}, 0\ns_cbranch_scc0 {l1}\ns_memrealtime {r(idx[0])}\ns_branch {l2}\n{l1}:\ns_memrealtime {r(idx[1])}\n{l2}:')
    def dump_stamps(self):
        if not self.stamps: return
        a = self.a
        a('s_waitcnt lgkmcnt(0)')
        a(f's_lshl_b32 s{sA}, s2, 4\ns_add_u32 s{sA}, s{sA}, s{sW}\ns_lshl_b32 s{sA}, s{sA}, 7\ns_add_u32 s{sA}, s{sA}, {WS_STAMP}')
        a('s_mov_b64 exec, 1')
        a(f'v_mov_b32 v2, s{sA}')
        for i in range(18):
            a(f'v_mov_b32 v3, s{sStamp0+2*i}\nglobal_store_dword v2, v3, {S2(sWS)} offset:{4*i}\ns_nop 0')
        a('s_waitcnt vmcnt(0)')
    def srd(self, ptr, nbytes):
        self.a(f's_mov_b32 s{sSRD}, s{ptr}\ns_and_b32 s{sSRD+1}, s{ptr+1}, 0xffff\ns_mov_b32 s{sSRD+2}, {nbytes}\ns_mov_b32 s{sSRD+3}, 0x20000')
    def publish(self, store):
        a = self.a
        if self.force_slow:
            a(store + ' sc1'); return
        ls = self.lab('slow'); lr = self.lab('ret')
        a(f's_cmp_lg_u32 s{sMode}, 0\ns_cbranch_scc1 {ls}')
        a(store)
        a.label(lr)
        self.deferred.append((ls, store + ' sc1', lr))
    def flush_deferred(self):
        for ls, st, lr in self.deferred:
            self.a.label(ls, keep=False); self.a(st); self.a(f's_branch {lr}')
        self.deferred = []
    def spin_tail(self, loop, code, sleep=0):
        a = self.a
        if sleep: a(f's_sleep {sleep}')
        a(f's_sub_u32 s{sSpin}, s{sSpin}, 1\ns_cbranch_scc0 {loop}\ns_mov_b32 s{sA}, {code}\ns_branch L_fail')
    def spin_init(self):
        self.a(f's_mov_b32 s{sSpin}, {SPIN}')
    def wait_flag(self, vaddr, off, n, vtmp, code, sleep=1, extra=None):
        a = self.a; lp = self.lab('wf'); ok = self.lab('ok')
        self.spin_init()
        a.label(lp)
        mn = {1: 'ds_read_b32', 2: 'ds_read_b64', 4: 'ds_read_b128'}[n]
        a(f'{mn} {P(vtmp, n)}, {P(vaddr)} offset:{off}')
        if extra: a(extra)
        a('s_waitcnt lgkmcnt(0)')
        if n == 2: a(f'v_and_b32 {P(vtmp)}, {P(vtmp)}, {P(vtmp+1)}')
        if n == 4: a(f'v_and_b32 {P(vtmp)}, {P(vtmp)}, {P(vtmp+1)}\nv_and_b32 {P(vtmp+2)}, {P(vtmp+2)}, {P(vtmp+3)}\nv_and_b32 {P(vtmp)}, {P(vtmp)}, {P(vtmp+2)}')
        a(f'v_cmp_eq_u32 vcc, 0, {P(vtmp)}')
        a(f's_cbranch_vccz {ok}')
        self.spin_tail(lp, code, sleep)
        a.label(ok)
    def set_flag(self, vaddr, off, vOneI):
        self.a(f's_mov_b64 exec, 1\nds_write_b32 {P(vaddr)}, {P(vOneI)} offset:{off}\ns_mov_b64 exec, -1')
    def interleave(self, *chains):
        chains = [list(c) for c in chains]
        while any(chains):
            for c in chains:
                if c: self.a(c.pop(0))
    def allred(self, op, y, t, strides=(4, 8), rows=True):
        L = []
        for s in strides:
            L.append(f'{op}_dpp {P(y)}, {P(y)}, {P(y)} row_ror:{s} row_mask:0xf bank_mask:0xf')
        if rows:
            for sw in ('v_permlane16_swap_b32', 'v_permlane32_swap_b32'):
                L += [f'v_mov_b32 {P(t)}, {P(y)}', f'{sw} {P(y)}, {P(t)}', f'{op} {P(y)}, {P(y)}, {P(t)}']
        return L
    def gather16(self, R, vaddr, vT, code, name, limit=None, onfail=None):
        a = self.a; lp = self.lab('g'); ok = self.lab('ok')
        if limit: a(f's_mov_b32 s{sSpin}, {limit}')
        else: self.spin_init()
        a.label(lp)
        a(f'global_load_dwordx4 {P(R,4)}, {P(vaddr)}, {S2(sWS)} sc1\nglobal_load_dwordx4 {P(R+4,4)}, {P(vaddr)}, {S2(sWS)} offset:16 sc1')
        a('s_waitcnt vmcnt(0)')
        e = R + 8
        a(f'v_bitop3_b32 {P(e)}, {P(R)}, {P(R+1)}, {P(vT)} bitop3:0x7e')
        a(f'v_bitop3_b32 {P(e+1)}, {P(R+2)}, {P(R+3)}, {P(vT)} bitop3:0x7e')
        a(f'v_bitop3_b32 {P(e+2)}, {P(R+4)}, {P(R+5)}, {P(vT)} bitop3:0x7e')
        a(f'v_bitop3_b32 {P(e+3)}, {P(R+6)}, {P(R+7)}, {P(vT)} bitop3:0x7e')
        a(f'v_or3_b32 {P(e)}, {P(e)}, {P(e+1)}, {P(e+2)}\nv_or_b32 {P(e)}, {P(e)}, {P(e+3)}')
        a(f'v_cmp_ne_u16 vcc, 0, {P(e)}')
        a(f's_cbranch_vccz {ok}')
        if onfail:
            a(f's_sub_u32 s{sSpin}, s{sSpin}, 1\ns_cbranch_scc0 {lp}\ns_branch {onfail}')
        else:
            self.spin_tail(lp, code)
        a.label(ok)
    def pack8(self, XP, R):
        for i in range(4):
            self.a(f'v_perm_b32 {P(XP+i)}, {P(R+2*i+1)}, {P(R+2*i)}, s{sPerm}')

    def build(self):
        a = self.a
        a.raw(f'.amdgcn_target "amdgcn-amd-amdhsa--gfx950"\n.text\n.globl {KN}\n.p2align 8\n.type {KN},@function\n{KN}:')
        a('s_cmp_ge_u32 s2, 256\ns_cbranch_scc1 L_end')
        a(f's_load_dwordx16 s[4:19], s[0:1], 0\ns_load_dwordx8 s[20:27], s[0:1], 64')
        a(f'v_lshrrev_b32 v2, 6, v0\nv_and_b32 v1, 63, v0\ns_and_b32 s{sG}, s2, 7\ns_lshr_b32 s{sJ}, s2, 3')
        a(f'v_readfirstlane_b32 s{sW}, v2')
        a(f's_mov_b32 s{sPass}, 0')
        if self.stamps:
            for i in range(18): a(f's_mov_b32 s{sStamp0+2*i}, 0')
        a(f's_and_b32 s{sWL}, s{sW}, 3')
        a(f's_cmp_eq_u32 s{sW}, 8\ns_cbranch_scc0 L_AD')
        self.build_L()
        a.label('L_AD', keep=False)
        a(f's_cmp_ge_u32 s{sW}, 4\ns_cbranch_scc1 L_D')
        self.build_A()
        self.build_D()
        self.flush_deferred()
        a.label('L_fail', keep=False)
        a(f's_mov_b64 exec, 1\nv_mov_b32 v2, s{sA}\nv_mov_b32 v3, 0\nglobal_store_dword v3, v2, {S2(sDBG)}\ns_waitcnt vmcnt(0)')
        a.label('L_end')
        a('s_endpgm')
        return a.text()

    def build_L(self):
        a = self.a
        vl = 1
        vWQ, vK0, vV0, vV1, vWo, vFo, vW2o, vOneI, vZ, t0, t1 = 2, 3, 7, 8, 9, 10, 11, 12, 13, 14, 15
        G, J = f's{sG}', f's{sJ}'
        self.stamp('L', 'start', once=True)
        a(f'v_mov_b32 {P(vZ)}, 0\nv_lshlrev_b32 {P(t0)}, 2, {P(vl)}\nds_write_b32 {P(t0)}, {P(vZ)} offset:{L_F}\nv_mov_b32 {P(vOneI)}, 1')
        a(f'v_lshrrev_b32 {P(t0)}, 1, {P(vl)}\nv_and_b32 {P(t1)}, 1, {P(vl)}\nv_lshlrev_b32 {P(t1)}, 4, {P(t1)}\ns_lshl_b32 s{sA}, {G}, 10\ns_lshl_b32 s{sB}, {J}, 5\ns_add_u32 s{sA}, s{sA}, s{sB}')
        a(f'v_lshl_add_u32 {P(vWQ)}, {P(t0)}, 13, {P(t1)}\nv_add_u32 {P(vWQ)}, s{sA}, {P(vWQ)}')
        a(f'v_lshl_add_u32 {P(vW2o)}, {P(t0)}, 10, {P(t1)}\nv_add_u32 {P(vW2o)}, s{sB}, {P(vW2o)}')
        a('s_waitcnt lgkmcnt(0)')
        self.stamp('L', 'ka', once=True, pro=True)
        seq = []
        issued = [0]
        ms = []
        def dma(voff, soff_expr, lds, nt, depth, srd):
            if issued[0] >= depth: a(f's_waitcnt vmcnt({depth-1})')
            for e, fl in list(ms):
                if issued[0] - depth >= e:
                    a(f's_mov_b64 exec, 1\nds_write_b32 {P(vZ)}, {P(vOneI)} offset:{fl}\ns_mov_b64 exec, -1'); ms.remove((e, fl))
                    self.stamp('L', 'ms%d' % fl, once=True, pro=True)
            a(soff_expr)
            a(f's_mov_b32 m0, {lds}')
            a(f'buffer_load_dwordx4 {P(voff)}, s[{srd}:{srd+3}], s{sD} offen{nt} lds')
            issued[0] += 1
        def setup_rest():
            a(f'v_lshrrev_b32 {P(t0)}, 4, {P(vl)}\nv_and_b32 {P(t1)}, 15, {P(vl)}\nv_xor_b32 {P(vK0)}, {P(t1)}, {P(t0)}\nv_lshlrev_b32 {P(vK0)}, 4, {P(vK0)}\nv_lshl_add_u32 {P(vK0)}, {P(t0)}, 8, {P(vK0)}')
            for i in range(1, 4): a(f'v_xor_b32 {P(vK0+i)}, {64*i}, {P(vK0)}')
            a(f'v_lshlrev_b32 {P(vV0)}, 1, {P(t0)}\nv_xor_b32 {P(t1)}, {P(t1)}, {P(vV0)}\nv_lshlrev_b32 {P(t1)}, 4, {P(t1)}\nv_lshl_add_u32 {P(vV0)}, {P(t0)}, 8, {P(t1)}\nv_xor_b32 {P(vV1)}, 128, {P(vV0)}')
            a(f'v_lshrrev_b32 {P(t0)}, 1, {P(vl)}\nv_and_b32 {P(t0)}, 3, {P(t0)}\nv_lshlrev_b32 {P(t0)}, 7, {P(t0)}')
            a(f'v_lshrrev_b32 {P(t1)}, 5, {P(vl)}\nv_lshl_add_u32 {P(t0)}, {P(t1)}, 2, {P(t0)}')
            a(f'v_lshrrev_b32 {P(t1)}, 3, {P(vl)}\nv_and_b32 {P(t1)}, 3, {P(t1)}\nv_add_u32 {P(t0)}, {P(t0)}, {P(t1)}\nv_lshlrev_b32 {P(t0)}, 10, {P(t0)}')
            a(f'v_and_b32 {P(t1)}, 1, {P(vl)}\nv_lshlrev_b32 {P(t1)}, 4, {P(t1)}\ns_lshl_b32 s{sB}, {J}, 5\nv_add3_u32 {P(vWo)}, {P(t0)}, {P(t1)}, s{sB}')
            a(f's_movk_i32 s{sB}, 3584\nv_mul_lo_u32 {P(vFo)}, {P(vl)}, s{sB}\ns_mul_i32 s{sB}, {G}, 448\ns_lshl_b32 s{sC}, {J}, 4\ns_add_u32 s{sB}, s{sB}, s{sC}')
            a(f's_cmp_ge_u32 {J}, 28\ns_cselect_b32 s{sB}, 0x7f000000, s{sB}\nv_add_u32 {P(vFo)}, s{sB}, {P(vFo)}')
        SR = {'wq': 36, 'k': 40, 'v': 52, 'wo': 56, 'w1': 60, 'w3': 4, 'w2': 8}
        def mk(name, ptr, nb):
            r = SR[name]
            a(f's_mov_b32 s{r}, s{ptr}\ns_and_b32 s{r+1}, s{ptr+1}, 0xffff\ns_mov_b32 s{r+2}, {nb}\ns_mov_b32 s{r+3}, 0x20000')
        sKV, sWOb, sW2b = 45, 46, 47
        tiles = {
            'wq': [(vWQ, f's_mov_b32 s{sD}, {n*262144}', L_WQ + 1024*n, self.nt_w) for n in range(16)],
            'k': [(vK0 + (n & 3), f's_add_u32 s{sD}, s{sKV}, {1024*n}', L_K + 1024*n, self.nt_kv) for n in range(32)],
            'v': [(vV1 if n & 1 else vV0, f's_add_u32 s{sD}, s{sKV}, {1024*n}', L_V + 1024*n, self.nt_kv) for n in range(32)],
            'wo': [(vWo, f's_add_u32 s{sD}, s{sWOb}, {8192*n}', L_WO + 1024*n, self.nt_w) for n in range(16)],
            'w1': [(vFo, f's_mov_b32 s{sD}, {229376*n}', L_W1 + 1024*n, self.nt_w) for n in range(8)],
            'w3': [(vFo, f's_mov_b32 s{sD}, {229376*n}', L_W3 + 1024*n, self.nt_w) for n in range(8)],
            'w2': [(vW2o, f's_add_u32 s{sD}, s{sW2b}, {32768*n}', L_W2 + 1024*n, self.nt_w) for n in range(8)],
        }
        plan = self.plan
        assert sorted((t, i) for t, i, d in plan) == sorted((t, i) for t in tiles for i in range(len(tiles[t])))
        last = {}
        for pos, (t, i, d) in enumerate(plan): last[t] = pos
        msdef = [(last['wq'], MS_WQ), (last['k'], MS_K), (last['v'], MS_V), (last['wo'], MS_WO), (max(last['w1'], last['w3']), MS_W13), (last['w2'], MS_W2)]
        ms.extend(msdef)
        mk('wq', sWQ, 4194304)
        nfirst = self.nfirst
        def issue(pos):
            t, i, d = plan[pos]
            voff, so, lds, nt = tiles[t][i]
            dma(voff, so, lds, nt, d, SR[t])
        for pos in range(nfirst):
            assert plan[pos][0] == 'wq'
            issue(pos)
        setup_rest()
        mk('k', sK, 67108864); mk('v', sV, 67108864); mk('wo', sWO, 4194304); mk('w1', sW1, 1835008); mk('w3', sW3, 1835008); mk('w2', sW2, 1835008)
        a(f's_lshl_b32 s{sKV}, {G}, 23\ns_lshl_b32 s{sB+0}, {J}, 15')
        a(f's_add_u32 s{sKV}, s{sKV}, s{sB+0}')
        a(f's_add_u32 s{sKV}, s{sKV}, 7340032\ns_lshl_b32 s{sWOb}, {G}, 19\ns_mul_i32 s{sW2b}, {G}, {224*1024}')
        a('s_barrier')
        for pos in range(nfirst, len(plan)): issue(pos)
        n = len(plan)
        for e, fl in sorted(ms):
            a(f's_waitcnt vmcnt({n - 1 - e})\ns_mov_b64 exec, 1\nds_write_b32 {P(vZ)}, {P(vOneI)} offset:{fl}\ns_mov_b64 exec, -1')
            self.stamp('L', 'ms%d' % fl, once=True, pro=True)
        a('s_waitcnt lgkmcnt(0)')
        self.dump_stamps()
        a('s_endpgm')

    def build_A(self):
        a = self.a
        vl = 1
        vKo, vOneI, vP4, vP32 = 2, 3, 4, 5
        vQa, vPw, vPr, vMw, vMr, vVa0, vVa1, vOPa = 8, 9, 10, 11, 12, 13, 14, 15
        vT32, vT16, vT8, vZ, vYa, vYL, vXa, vX0, vX1 = 16, 17, 18, 19, 20, 21, 22, 23, 24
        t0, t1, t2, t3 = 25, 26, 27, 28
        vOut = 29
        K, V, Q, Sx, Pw, D, M4, AL = 32, 64, 96, 112, 120, 124, 156, 160
        Pa, O = Q, Sx
        R = 164
        G, J, W = f's{sG}', f's{sJ}', f's{sWL}'
        self.stamp('A', 'start', once=True)
        a('s_waitcnt lgkmcnt(0)')
        a(f's_load_dword s{sE}, {S2(sWS)}, {WS_EPOCH}')
        a(f'v_mov_b32 {P(vOneI)}, 1\nv_mov_b32 {P(vP4)}, 0\nv_mov_b32 {P(vP32)}, 0')
        a(f'v_and_b32 {P(t0)}, 3, {P(vl)}\nv_lshrrev_b32 {P(t2)}, 4, {P(vl)}\nv_mul_u32_u24 {P(t1)}, 320, {P(t0)}\nv_lshl_add_u32 {P(t1)}, {P(t2)}, 4, {P(t1)}\nv_add_u32 {P(vQa)}, {L_Q}, {P(t1)}')
        a(f'v_lshlrev_b32 {P(t1)}, 6, {P(t2)}\nv_lshl_add_u32 {P(t1)}, {P(t0)}, 4, {P(t1)}\nv_add_u32 {P(vPr)}, {L_P}, {P(t1)}\ns_lshl_b32 s{sB}, {W}, 8\nv_add_u32 {P(vPw)}, s{sB}, {P(vPr)}')
        a(f'v_lshlrev_b32 {P(t1)}, 4, {P(t0)}\nv_add_u32 {P(vMr)}, {L_M}, {P(t1)}\ns_lshl_b32 s{sB}, {W}, 2\nv_add_u32 {P(vMw)}, s{sB}, {P(vMr)}')
        a(f'v_and_b32 {P(t1)}, 15, {P(vl)}\nv_lshrrev_b32 {P(t1)}, 2, {P(t1)}')
        a(f'v_and_b32 {P(t3)}, 1, {P(t2)}\nv_lshlrev_b32 {P(t3)}, 3, {P(t3)}\nv_lshl_add_u32 {P(t3)}, {P(t1)}, 1, {P(t3)}')
        a(f'v_lshl_add_u32 {P(t1)}, {P(t2)}, 2, {P(t1)}\nv_lshlrev_b32 {P(t1)}, 8, {P(t1)}')
        a(f'v_lshrrev_b32 {P(vVa1)}, 1, {P(t0)}\ns_lshl_b32 s{sB}, {W}, 2\nv_add_u32 {P(vVa1)}, s{sB}, {P(vVa1)}\nv_xor_b32 {P(vVa1)}, {P(vVa1)}, {P(t3)}')
        a(f'v_lshl_add_u32 {P(t1)}, {P(vVa1)}, 4, {P(t1)}\nv_and_b32 {P(t3)}, 1, {P(t0)}\nv_lshl_add_u32 {P(t1)}, {P(t3)}, 3, {P(t1)}')
        a(f'v_add_u32 {P(vVa0)}, {L_V}, {P(t1)}\nv_xor_b32 {P(vVa1)}, 32, {P(t1)}\nv_add_u32 {P(vVa1)}, {L_V}, {P(vVa1)}')
        a(f'v_and_b32 {P(t1)}, 15, {P(vl)}\nv_xor_b32 {P(t3)}, {P(t1)}, {P(t2)}\nv_lshlrev_b32 {P(t3)}, 4, {P(t3)}\nv_lshl_add_u32 {P(vKo)}, {P(t1)}, 8, {P(t3)}')
        a(f's_lshl_b32 s{sB}, {G}, 16\ns_lshl_b32 s{sC}, {W}, 14\ns_add_u32 s{sB}, s{sB}, s{sC}\ns_lshl_b32 s{sC}, {J}, 6\ns_add_u32 s{sB}, s{sB}, s{sC}\ns_add_u32 s{sB}, s{sB}, {WS_OP}')
        a(f'v_lshlrev_b32 {P(t1)}, 11, {P(t2)}\nv_lshl_add_u32 {P(t1)}, {P(t0)}, 4, {P(t1)}\nv_add_u32 {P(vOPa)}, s{sB}, {P(t1)}')
        a(f'v_and_b32 {P(t1)}, 15, {P(vl)}\nv_lshrrev_b32 {P(t1)}, 1, {P(t1)}\ns_lshl_b32 s{sB}, {J}, 3\nv_add_u32 {P(t1)}, s{sB}, {P(t1)}')
        a(f'v_lshrrev_b32 {P(t3)}, 6, {P(t1)}\nv_lshlrev_b32 {P(t3)}, 14, {P(t3)}\nv_and_b32 {P(t1)}, 63, {P(t1)}\nv_lshl_add_u32 {P(t1)}, {P(t1)}, 7, {P(t3)}')
        a(f'v_and_b32 {P(t3)}, 1, {P(vl)}\nv_lshl_add_u32 {P(t3)}, {P(t2)}, 1, {P(t3)}\nv_lshlrev_b32 {P(t3)}, 3, {P(t3)}')
        a(f's_lshl_b32 s{sB}, {W}, 13\ns_add_u32 s{sB}, s{sB}, {WS_Y}\nv_add3_u32 {P(vYa)}, {P(t1)}, {P(t3)}, s{sB}')
        a(f'v_add_u32 {P(vYL)}, {L_YZ}, {P(t3)}')
        a(f's_lshl_b32 s{sB}, {G}, 11\ns_lshl_b32 s{sC}, {J}, 6\ns_add_u32 s{sB}, s{sB}, s{sC}\nv_add_u32 {P(vXa)}, s{sB}, {P(t3)}')
        a(f's_lshl_b32 s{sB}, {J}, 5\nv_lshrrev_b32 {P(t3)}, 1, {P(t3)}\nv_add_u32 {P(vOut)}, s{sB}, {P(t3)}')
        a(f'global_load_dword {P(vX1)}, {P(vOut)}, {S2(sX)}')
        a(f'v_mov_b32 {P(vZ)}, 0')
        a(f's_mov_b32 s{sHi}, 0xffff0000\ns_mov_b32 s{sCs}, {f2u(C_SCALE)}\ns_mov_b32 s{sF00}, 0xffffff00')
        a(f's_mov_b32 s{sMaskB}, 0x00030003\ns_mov_b32 s{sMaskB+1}, 0x00030003\ns_lshl_b32 s{sA}, {G}, 1\ns_lshl_b64 {S2(sMaskA)}, {S2(sMaskB)}, s{sA}')
        a(f's_mov_b32 s{sMaskC}, 0x000f000f\ns_mov_b32 s{sMaskC+1}, 0x000f000f')
        a('s_barrier')
        a('s_waitcnt lgkmcnt(0)')
        a(f's_add_u32 s{sT}, s{sE}, 1\nv_mov_b32 {P(vT32)}, s{sT}\nv_and_b32 {P(vT16)}, 0xffff, {P(vT32)}\nv_and_b32 {P(vT8)}, 0xff, {P(vT32)}')
        self.wait_flag(vZ, MS_K, 1, t0, 30, sleep=2)
        self.stamp('A', 'Kland', once=True, pro=True)
        a(f's_lshl_b32 s{sA}, s{sWL}, 13\ns_add_u32 s{sA}, s{sA}, {L_K}')
        for kk in range(4):
            a(f'v_xor_b32 {P(t1)}, {64*kk}, {P(vKo)}\nv_add_u32 {P(t1)}, s{sA}, {P(t1)}')
            for T in range(2):
                a(f'ds_read_b128 {P(K+16*T+4*kk,4)}, {P(t1)} offset:{4096*T}')
        a('s_waitcnt vmcnt(0)')
        a(f'v_lshlrev_b32 {P(vX0)}, 16, {P(vX1)}\nv_and_b32 {P(vX1)}, s{sHi}, {P(vX1)}')
        self.wait_flag(vZ, F_X0, 1, t0, 31, sleep=1)
        a(f'ds_read_b32 {P(t0)}, {P(vZ)} offset:{F_MODE}\ns_waitcnt lgkmcnt(0)\nv_readfirstlane_b32 s{sMode}, {P(t0)}')
        a('s_branch L_A_q')
        a.label('L_A_loop', keep=False)
        a('s_barrier')
        a.label('L_A_q')
        self.stamp('A', 'X')
        self.stamp('A', 'X', pro=True)
        for kk in range(4):
            a(f'ds_read_b128 {P(Q+4*kk,4)}, {P(vQa)} offset:{64*kk}')
        a('s_waitcnt lgkmcnt(0)')
        for kk in range(4):
            for T in range(2):
                c = '0' if kk == 0 else P(Sx+4*T, 4)
                a(f'v_mfma_f32_16x16x32_bf16 {P(Sx+4*T,4)}, {P(K+16*T+4*kk,4)}, {P(Q+4*kk,4)}, {c}')
        a(f'v_max3_f32 {P(t0)}, {P(Sx)}, {P(Sx+1)}, {P(Sx+2)}\nv_max3_f32 {P(t1)}, {P(Sx+4)}, {P(Sx+5)}, {P(Sx+6)}')
        a(f'v_max3_f32 {P(t0)}, {P(t0)}, {P(Sx+3)}, {P(Sx+7)}\nv_max_f32 {P(t0)}, {P(t0)}, {P(t1)}')
        for i in self.allred('v_max_f32', t0, t1, strides=()): a(i)
        a(f'v_mul_f32 {P(t0)}, s{sCs}, {P(t0)}')
        for i in range(8): a(f'v_fma_f32 {P(Sx+i)}, {P(Sx+i)}, s{sCs}, -{P(t0)}')
        for i in range(8): a(f'v_exp_f32 {P(Sx+i)}, {P(Sx+i)}')
        for i in range(4): a(f'v_cvt_pk_bf16_f32 {P(Pw+i)}, {P(Sx+2*i)}, {P(Sx+2*i+1)}')
        a(f's_mov_b64 exec, {S2(sMaskC)}\nds_write_b128 {P(vPw)}, {P(Pw,4)}\ns_mov_b64 exec, 15\nds_write_b32 {P(vMw)}, {P(t0)}\ns_mov_b64 exec, -1')
        lp0 = self.lab('pp0'); lp1 = self.lab('pp1')
        a(f's_cmp_eq_u32 s{sPass}, 0\ns_cbranch_scc1 {lp0}')
        a('s_waitcnt lgkmcnt(0)\ns_barrier')
        self.stamp('A', 'P')
        for gq in range(4):
            a(f'ds_read_b128 {P(Pa+4*gq,4)}, {P(vPr)} offset:{256*gq}')
        a(f'ds_read_b128 {P(M4,4)}, {P(vMr)}')
        a(f's_branch {lp1}')
        a.label(lp0, keep=False)
        a(f's_lshl_b32 s{sA}, s{sWL}, 2\nv_mov_b32 {P(t1)}, s{sA}')
        self.set_flag(t1, F_PF, vOneI)
        self.wait_flag(vZ, F_PF, 4, M4, 32, sleep=0)
        self.stamp('A', 'P')
        for gq in range(4):
            a(f'ds_read_b128 {P(Pa+4*gq,4)}, {P(vPr)} offset:{256*gq}')
        a(f'ds_read_b128 {P(M4,4)}, {P(vMr)}')
        self.wait_flag(vZ, MS_V, 1, t0, 33, sleep=0)
        self.stamp('A', 'Vland', once=True)
        self.stamp('A', 'Vland', once=True, pro=True)
        for t in range(2):
            for gq in range(4):
                for hh in range(2):
                    r = V + 16*t + 4*gq + 2*hh
                    a(f'ds_read_b64_tr_b16 {P(r,2)}, {P(vVa0 if t == 0 else vVa1)} offset:{8192*gq + 4096*hh}')
        a.label(lp1)
        a('s_waitcnt lgkmcnt(0)')
        mf = []
        for t in range(2):
            for gq in range(4):
                mf.append(f'v_mfma_f32_16x16x32_bf16 {P(D+16*t+4*gq,4)}, {P(V+16*t+4*gq,4)}, {P(Pa+4*gq,4)}, 0')
        al = [f'v_max3_f32 {P(t0)}, {P(M4)}, {P(M4+1)}, {P(M4+2)}', f'v_max_f32 {P(t0)}, {P(t0)}, {P(M4+3)}']
        al += [f'v_sub_f32 {P(AL+i)}, {P(M4+i)}, {P(t0)}' for i in range(4)]
        al += [f'v_exp_f32 {P(AL+i)}, {P(AL+i)}' for i in range(4)]
        for i in range(8):
            a(mf[i])
            if al: a(al.pop(0))
        for x in al: a(x)
        for t in range(2):
            for gq in range(4):
                d = D + 16*t + 4*gq
                alp = AL + (gq & 2); hi = gq & 1
                sel = f'op_sel:[0,{hi},0] op_sel_hi:[1,{hi},1]'
                for h2 in range(2):
                    o = O + 4*t + 2*h2
                    if gq == 0:
                        a(f'v_pk_mul_f32 {P(o,2)}, {P(d+2*h2,2)}, {P(alp,2)} op_sel:[0,{hi}] op_sel_hi:[1,{hi}]')
                    else:
                        a(f'v_pk_fma_f32 {P(o,2)}, {P(d+2*h2,2)}, {P(alp,2)}, {P(o,2)} {sel}')
        for i in range(8): a(f'v_and_or_b32 {P(O+i)}, {P(O+i)}, s{sF00}, {P(vT8)}')
        a(f'v_add_u32 {P(t1)}, 8192, {P(vOPa)}')
        a(f's_mov_b64 exec, {S2(sMaskC)}')
        self.publish(f'global_store_dwordx4 {P(vOPa)}, {P(O,4)}, {S2(sWS)}')
        self.publish(f'global_store_dwordx4 {P(t1)}, {P(O+4,4)}, {S2(sWS)}')
        a('s_mov_b64 exec, -1')
        self.stamp('A', 'OPpub')
        lnext = self.lab('anext')
        a(f's_cmp_ge_u32 s{sWL}, 2\ns_cbranch_scc1 {lnext}')
        self.colgather(R, vYa, 0, vYL, 0, vT8, vP32, F_Y, 20)
        self.stamp('A', 'S5got')
        self.resid_publish(R, vX0, vX1, vXa, WS_X1, vT16, t0, t1, t2)
        self.set_flag(vP4, F_X1, vOneI)
        self.stamp('A', 'S5pub')
        lfin = self.lab('afin')
        a(f's_cmp_lg_u32 s{sPass}, 0\ns_cbranch_scc1 {lfin}')
        self.colgather(R, vYa, 0x10000, vYL, 64, vT8, vP32, F_Z, 22)
        self.stamp('A', 'S8got')
        self.resid_publish(R, vX0, vX1, vXa, WS_X2, vT16, t0, t1, t2)
        self.set_flag(vZ, F_X2, vOneI)
        a.label(lnext)
        if self.onepass: a('s_branch L_A_end')
        a(f's_cmp_lg_u32 s{sPass}, 0\ns_cbranch_scc1 L_A_end')
        a(f's_mov_b32 s{sPass}, 1\ns_add_u32 s{sT}, s{sT}, 1\nv_mov_b32 {P(vT32)}, s{sT}\nv_and_b32 {P(vT16)}, 0xffff, {P(vT32)}\nv_and_b32 {P(vT8)}, 0xff, {P(vT32)}')
        a(f'v_add_u32 {P(vYa)}, 0x20000, {P(vYa)}\nv_add_u32 {P(vYL)}, 128, {P(vYL)}\nv_mov_b32 {P(vP4)}, 4\nv_mov_b32 {P(vP32)}, 32')
        a('s_branch L_A_loop')
        a.label(lfin, keep=False)
        a(f's_cmp_lg_u32 s{sG}, 0\ns_cbranch_scc1 L_A_end')
        self.colgather(R, vYa, 0x10000, vYL, 64, vT8, vP32, F_Z, 24, abort=(vZ, F_DONE, t3, 'L_A_end'))
        self.stamp('A', 'S8got')
        a(f'v_add_f32 {P(R)}, {P(R)}, {P(vX0)}\nv_add_f32 {P(R+1)}, {P(R+1)}, {P(vX1)}\nv_cvt_pk_bf16_f32 {P(t0)}, {P(R)}, {P(R+1)}')
        a(f's_mov_b64 exec, {S2(sMaskB)}\nglobal_store_dword {P(vOut)}, {P(t0)}, {S2(sOUT)}\ns_mov_b64 exec, -1')
        self.stamp('A', 'end', once=True)
        self.set_flag(vZ, F_DONE, vOneI)
        a(f's_cmp_lg_u32 s2, 0\ns_cbranch_scc1 L_A_end')
        a(f's_mov_b64 exec, 1\nv_mov_b32 {P(t1)}, {WS_EPOCH}\nglobal_store_dword {P(t1)}, {P(vT32)}, {S2(sWS)}')
        a.label('L_A_end', keep=False)
        a('s_mov_b64 exec, -1')
        self.dump_stamps()
        a('s_endpgm')

    def colgather(self, R, vYa, goff, vYL, loff, vT8, vP32, fl4, code, abort=None):
        a = self.a
        self.wait_flag(vP32, fl4, 4, R + 4 - 4 + 0 if False else 124, code, sleep=1, extra=f'ds_read_b64 {P(R,2)}, {P(vYL)} offset:{loff}')
        a(f'v_xor_b32 {P(R)}, {P(R)}, {P(vT8)}\nv_xor_b32 {P(R+1)}, {P(R+1)}, {P(vT8)}')
        a(f's_not_b64 exec, {S2(sMaskA)}')
        if goff: a(f'v_add_u32 {P(R+3)}, {goff}, {P(vYa)}')
        addr = R + 3 if goff else vYa
        lp = self.lab('cgr'); ok = self.lab('ok')
        self.spin_init()
        a.label(lp)
        a(f'global_load_dwordx2 {P(R,2)}, {P(addr)}, {S2(sWS)} sc1')
        if abort:
            vZ, fl, tmp, lab = abort
            a(f'ds_read_b32 {P(tmp)}, {P(vZ)} offset:{fl}\ns_waitcnt lgkmcnt(0)\nv_cmp_ne_u32 vcc, 0, {P(tmp)}\ns_cbranch_vccnz {lab}')
        a('s_waitcnt vmcnt(0)')
        a(f'v_xor_b32 {P(R)}, {P(R)}, {P(vT8)}\nv_xor_b32 {P(R+1)}, {P(R+1)}, {P(vT8)}\nv_or_b32 {P(R+2)}, {P(R)}, {P(R+1)}\nv_and_b32 {P(R+2)}, 0xff, {P(R+2)}\nv_cmp_ne_u32 vcc, 0, {P(R+2)}')
        a(f's_cbranch_vccz {ok}')
        self.spin_tail(lp, code + 1)
        a.label(ok)
        a('s_mov_b64 exec, -1')
        for s in (2, 4, 8):
            for r in (R, R + 1):
                a(f'v_add_f32_dpp {P(r)}, {P(r)}, {P(r)} row_ror:{s} row_mask:0xf bank_mask:0xf')

    def resid_publish(self, R, vX0, vX1, vXa, region, vT16, t0, t1, t2):
        a = self.a
        a(f'v_add_f32 {P(R)}, {P(R)}, {P(vX0)}\nv_add_f32 {P(R+1)}, {P(R+1)}, {P(vX1)}\nv_cvt_pk_bf16_f32 {P(t2)}, {P(R)}, {P(R+1)}')
        a(f'v_add_u32 {P(R+3)}, {region}, {P(vXa)}')
        a(f'v_lshl_or_b32 {P(R)}, {P(t2)}, 16, {P(vT16)}\nv_and_or_b32 {P(R+1)}, {P(t2)}, s{sHi}, {P(vT16)}')
        a(f's_mov_b64 exec, {S2(sMaskB)}')
        self.publish(f'global_store_dwordx2 {P(R+3)}, {P(R,2)}, {S2(sWS)}')
        a('s_mov_b64 exec, -1')
        a(f'v_lshlrev_b32 {P(vX0)}, 16, {P(t2)}\nv_and_b32 {P(vX1)}, s{sHi}, {P(t2)}')

    def build_D(self):
        a = self.a
        vl = 1
        vTr, vTr13, vTr2 = 2, 3, 4
        vAG, vPub, vYa, vYL, vHa, vHp = 5, 6, 7, 8, 9, 10
        vT32, vT16, vT8, vZ, vOne = 11, 12, 13, 14, 15
        vQw, vPr, vMr, vMLa, vMLp, vOPa, vOp, vT16x = 16, 17, 18, 19, 20, 21, 22, 23
        t0, t1, t2, t3, t4 = 24, 25, 26, 27, 28
        vDum = 30
        WQ, WO, W13, W2 = 32, 48, 64, 80
        csq, cs13 = 88, 89
        XP = 92; R = 96
        ACC = 108
        y, s1, s2 = 124, 125, 126
        Gr = 128
        ONE4 = 132
        Pa = 136; M4 = 152; LL = ACC
        Ga, Gb = 156, 160
        wa, wb = 164, 165
        Ra, Rb = R, R + 4
        vOneI, vP4, vFl = 29, 31, 90
        G, J, W = f's{sG}', f's{sJ}', f's{sWL}'
        a.label('L_D', keep=False)
        self.stamp('D', 'start', once=True)
        a('s_waitcnt lgkmcnt(0)')
        self.stamp('D', 'ka', once=True, pro=True)
        a(f's_load_dword s{sE}, {S2(sWS)}, {WS_EPOCH}')
        lx = self.lab('d2')
        a(f's_cmp_lg_u32 {W}, 2\ns_cbranch_scc1 {lx}')
        a(f's_lshl_b32 s{sA}, {G}, 11\ns_and_b32 s{sB}, {J}, 15\ns_lshl_b32 s{sB}, s{sB}, 7\ns_add_u32 s{sA}, s{sA}, s{sB}\nv_lshlrev_b32 {P(t0)}, 14, {P(vl)}\nv_add_u32 {P(t0)}, s{sA}, {P(t0)}')
        a(f's_mov_b64 exec, 63\nglobal_load_dword {P(vDum)}, {P(t0)}, {S2(sWS)} sc1\ns_mov_b64 exec, -1')
        a.label(lx)
        a(f'v_lshlrev_b32 {P(t0)}, 4, {P(vl)}\nglobal_load_dwordx4 {P(XP,4)}, {P(t0)}, {S2(sX)}')
        lx = self.lab('d0')
        a(f's_cmp_lg_u32 {W}, 0\ns_cbranch_scc1 {lx}')
        a(f's_getpc_b64 {S2(sTmp2)}')
        a.label('L_pc')
        a(f's_sub_u32 s{sTmp2}, s{sTmp2}, L_pc-{KN}\ns_subb_u32 s{sTmp2+1}, s{sTmp2+1}, 0')
        a(f's_and_b32 s{sA}, {J}, 1\ns_lshl_b32 s{sA}, s{sA}, 13\nv_lshlrev_b32 {P(t0)}, 6, {P(vl)}\nv_add_u32 {P(t0)}, s{sA}, {P(t0)}\nv_add_u32 {P(t1)}, 4096, {P(t0)}')
        a(f's_mov_b32 s{sA}, L_end-{KN}\nv_min_u32 {P(t0)}, s{sA}, {P(t0)}\nv_min_u32 {P(t1)}, s{sA}, {P(t1)}')
        a(f'global_load_dword {P(vDum)}, {P(t0)}, {S2(sTmp2)}\nglobal_load_dword {P(vDum)}, {P(t1)}, {S2(sTmp2)}')
        a.label(lx)
        a(f'v_lshrrev_b32 {P(t0)}, 4, {P(vl)}\nv_and_b32 {P(t1)}, 3, {P(vl)}\nv_and_b32 {P(t2)}, 15, {P(vl)}\nv_lshrrev_b32 {P(t2)}, 2, {P(t2)}')
        a(f's_lshl_b32 s{sA}, {W}, 3')
        a(f'v_lshlrev_b32 {P(t3)}, 12, {P(t0)}\nv_lshl_add_u32 {P(t3)}, {P(t1)}, 10, {P(t3)}\nv_lshl_add_u32 {P(t3)}, {P(t2)}, 5, {P(t3)}\nv_add_u32 {P(vTr)}, s{sA}, {P(t3)}')
        a(f'v_lshlrev_b32 {P(t3)}, 11, {P(t0)}\nv_lshl_add_u32 {P(t3)}, {P(t1)}, 9, {P(t3)}')
        a(f'v_lshl_add_u32 {P(t4)}, {P(t2)}, 5, {P(t3)}\nv_add_u32 {P(vTr2)}, s{sA}, {P(t4)}')
        a(f's_lshr_b32 s{sB}, {W}, 1\ns_lshl_b32 s{sB}, s{sB}, 3\nv_lshl_add_u32 {P(t4)}, {P(t2)}, 4, {P(t3)}\nv_add_u32 {P(vTr13)}, s{sB}, {P(t4)}')
        a(f's_lshl_b32 s{sA}, {G}, 11\nv_lshlrev_b32 {P(t3)}, 5, {P(vl)}\nv_add_u32 {P(vAG)}, s{sA}, {P(t3)}')
        a(f's_lshl_b32 s{sB}, {J}, 6\ns_add_u32 s{sB}, s{sB}, s{sA}\ns_lshl_b32 s{sC}, {W}, 4\ns_add_u32 s{sC}, s{sC}, s{sB}\nv_mov_b32 {P(vPub)}, s{sC}')
        a(f's_add_u32 s{sC}, s{sA}, {WS_H}\nv_lshlrev_b32 {P(t3)}, 4, {P(vl)}\nv_add_u32 {P(vHa)}, s{sC}, {P(t3)}')
        a(f's_lshl_b32 s{sD}, {J}, 5\ns_add_u32 s{sC}, s{sC}, s{sD}\ns_lshl_b32 s{sD}, {W}, 3\ns_add_u32 s{sC}, s{sC}, s{sD}\nv_mov_b32 {P(vHp)}, s{sC}')
        a(f's_lshl_b32 s{sC}, {J}, 3\ns_add_u32 s{sC}, s{sC}, {G}\ns_lshr_b32 s{sD}, s{sC}, 6\ns_lshl_b32 s{sD}, s{sD}, 14\ns_and_b32 s{sC}, s{sC}, 63\ns_lshl_b32 s{sC}, s{sC}, 7\ns_add_u32 s{sC}, s{sC}, s{sD}')
        a(f's_lshl_b32 s{sD}, {W}, 4\ns_add_u32 s{sC}, s{sC}, s{sD}\ns_add_u32 s{sC}, s{sC}, {WS_Y}\nv_mov_b32 {P(vYa)}, s{sC}')
        a(f's_add_u32 s{sD}, s{sD}, {L_YZ}\nv_mov_b32 {P(vYL)}, s{sD}')
        a(f'v_mul_u32_u24 {P(t3)}, 320, {P(t0)}\nv_and_b32 {P(t4)}, 15, {P(vl)}\nv_lshl_add_u32 {P(t3)}, {P(t4)}, 4, {P(t3)}\nv_add_u32 {P(vQw)}, {L_Q}, {P(t3)}')
        a(f'v_lshlrev_b32 {P(t3)}, 6, {P(t0)}\nv_lshl_add_u32 {P(t3)}, {P(t1)}, 4, {P(t3)}\nv_add_u32 {P(vPr)}, {L_P}, {P(t3)}')
        a(f'v_lshlrev_b32 {P(t3)}, 4, {P(t1)}\nv_add_u32 {P(vMr)}, {L_M}, {P(t3)}')
        a(f's_add_u32 s{sC}, s{sA}, {WS_ML}\nv_lshlrev_b32 {P(t4)}, 4, {P(vl)}\nv_add_u32 {P(vMLa)}, s{sC}, {P(t4)}')
        a(f's_add_u32 s{sC}, s{sB}, {WS_ML}\nv_add_u32 {P(vMLp)}, s{sC}, {P(t3)}')
        a(f's_lshl_b32 s{sC}, {G}, 16\ns_lshl_b32 s{sD}, {J}, 11\ns_add_u32 s{sC}, s{sC}, s{sD}\ns_add_u32 s{sC}, s{sC}, {WS_OP}\nv_add_u32 {P(vOPa)}, s{sC}, {P(t4)}')
        a(f's_add_u32 s{sC}, s{sB}, {WS_O}\nv_lshlrev_b32 {P(t3)}, 4, {P(t0)}\nv_add_u32 {P(vOp)}, s{sC}, {P(t3)}')
        a(f'v_mov_b32 {P(vZ)}, 0\nv_mov_b32 {P(vOne)}, 0x3f803f80')
        for i in range(4): a(f'v_mov_b32 {P(ONE4+i)}, {P(vOne)}')
        a(f's_mov_b32 s{sHi}, 0xffff0000\ns_mov_b32 s{sPerm}, 0x07060302\ns_mov_b32 s{sF00}, 0xffffff00')
        a('s_waitcnt lgkmcnt(0)')
        a(f's_add_u32 s{sT}, s{sE}, 1\nv_mov_b32 {P(vT32)}, s{sT}\nv_and_b32 {P(vT16)}, 0xffff, {P(vT32)}\nv_and_b32 {P(vT8)}, 0xff, {P(vT32)}')
        self.stamp('D', 'E', once=True, pro=True)
        a('s_barrier')
        self.stamp('D', 'B1', once=True, pro=True)
        a(f's_getreg_b32 s{sD}, hwreg(HW_REG_XCC_ID, 0, 4)\ns_lshl_b32 s{sD}, s{sD}, 12\nv_xor_b32 {P(vT16x)}, s{sD}, {P(vT16)}')
        a(f'v_mov_b32 {P(vOneI)}, 1\nv_mov_b32 {P(vP4)}, 0\ns_lshl_b32 s{sA}, {W}, 2\nv_mov_b32 {P(vFl)}, s{sA}')
        self.wait_flag(vZ, MS_WQ, 1, R, 1, sleep=1)
        a('s_waitcnt vmcnt(0)')
        self.stamp('D', 'xland', once=True, pro=True)
        for p in range(2):
            for i in range(4):
                a(f'ds_read_b64_tr_b16 {P(WQ+2*(4*p+i),2)}, {P(vTr)} offset:{L_WQ + 256*i + 128*p}')
        a('s_waitcnt lgkmcnt(0)')
        self.colsum(WQ, csq, ACC, vOne, t0)
        a.label('L_D_loop')
        self.ln_gemv(XP, WQ, csq, ACC, y, s1, s2, vOne, t0, t1, t2, t3)
        a(f'v_cvt_pk_bf16_f32 {P(t0)}, {P(y)}, {P(y)}')
        lq1 = self.lab('q1'); lq2 = self.lab('q2')
        a(f'v_add_u32 {P(t1)}, {WS_Q}, {P(vPub)}')
        a(f's_cmp_lg_u32 s{sPass}, 0\ns_cbranch_scc1 {lq1}')
        a(f'v_and_or_b32 {P(Gr)}, {P(t0)}, s{sHi}, {P(vT16x)}')
        self.quad_gather(Gr)
        a(f's_mov_b64 exec, 1\nglobal_store_dwordx4 {P(t1)}, {P(Gr,4)}, {S2(sWS)}\ns_mov_b64 exec, -1')
        a(f'v_and_or_b32 {P(Ga)}, {P(t0)}, s{sHi}, {P(vT16)}')
        self.quad_gather(Ga)
        a(f'v_add_u32 {P(t1)}, {WS_QB}, {P(vPub)}\ns_mov_b64 exec, 1\nglobal_store_dwordx4 {P(t1)}, {P(Ga,4)}, {S2(sWS)} sc1\ns_mov_b64 exec, -1')
        a(f's_branch {lq2}')
        a.label(lq1, keep=False)
        a(f'v_and_or_b32 {P(Gr)}, {P(t0)}, s{sHi}, {P(vT16)}')
        self.quad_gather(Gr)
        a('s_mov_b64 exec, 1')
        self.publish(f'global_store_dwordx4 {P(t1)}, {P(Gr,4)}, {S2(sWS)}')
        a('s_mov_b64 exec, -1')
        a.label(lq2)
        self.stamp('D', 'qpub')
        self.stamp('D', 'qpub', pro=True)
        lx = self.lab('pt')
        a(f's_cmp_lg_u32 s{sPass}, 0\ns_cbranch_scc1 {lx}')
        l3 = self.lab('pt3')
        a(f's_cmp_lg_u32 {W}, 2\ns_cbranch_scc1 {l3}')
        a(f's_lshl_b32 s{sC}, {G}, 16\ns_lshl_b32 s{sD}, {J}, 11\ns_add_u32 s{sC}, s{sC}, s{sD}\ns_add_u32 s{sC}, s{sC}, {WS_OP}\nv_lshlrev_b32 {P(t0)}, 7, {P(vl)}\nv_add_u32 {P(t0)}, s{sC}, {P(t0)}')
        a(f's_mov_b64 exec, 0xffff\nglobal_load_dword {P(vDum)}, {P(t0)}, {S2(sWS)} sc1\ns_mov_b64 exec, -1')
        a.label(l3)
        a(f's_cmp_lg_u32 {W}, 3\ns_cbranch_scc1 {lx}')
        a(f'v_and_b32 {P(t0)}, 7, {P(vl)}\ns_lshl_b32 s{sC}, {J}, 3\nv_add_u32 {P(t0)}, s{sC}, {P(t0)}\nv_lshrrev_b32 {P(t1)}, 6, {P(t0)}\nv_lshlrev_b32 {P(t1)}, 14, {P(t1)}\nv_and_b32 {P(t0)}, 63, {P(t0)}\nv_lshl_add_u32 {P(t0)}, {P(t0)}, 7, {P(t1)}')
        a(f'v_lshrrev_b32 {P(t1)}, 3, {P(vl)}\nv_and_b32 {P(t1)}, 1, {P(t1)}\nv_lshl_add_u32 {P(t0)}, {P(t1)}, 13, {P(t0)}\nv_lshrrev_b32 {P(t1)}, 4, {P(vl)}\nv_lshl_add_u32 {P(t0)}, {P(t1)}, 16, {P(t0)}\nv_add_u32 {P(t0)}, {WS_Y}, {P(t0)}')
        a(f'global_load_dword {P(vDum)}, {P(t0)}, {S2(sWS)} sc1')
        a.label(lx)
        lx = self.lab('qg')
        a(f's_cmp_lg_u32 {W}, 0\ns_cbranch_scc1 {lx}')
        a(f'v_add_u32 {P(t4)}, {WS_Q}, {P(vAG)}')
        lg1 = self.lab('qg1'); lg2 = self.lab('qg2'); lgB = self.lab('qgB')
        a(f's_cmp_lg_u32 s{sPass}, 0\ns_cbranch_scc1 {lg1}')
        if self.force_slow:
            a(f's_branch {lgB}')
        self.gather16(R, t4, vT16x, 2, 'qA', limit=NA_POLL, onfail=lgB)
        a(f's_mov_b32 s{sMode}, 0\ns_branch L_qmode')
        a.label(lgB, keep=False)
        a(f'v_add_u32 {P(t4)}, {WS_QB}, {P(vAG)}')
        self.gather16(R, t4, vT16, 2, 'qB')
        a(f's_mov_b32 s{sMode}, 1')
        a.label('L_qmode')
        a(f'v_mov_b32 {P(t0)}, s{sMode}\nds_write_b32 {P(vZ)}, {P(t0)} offset:{F_MODE}\ns_branch {lg2}')
        a.label(lg1, keep=False)
        self.gather16(R, t4, vT16, 2, 'q')
        a.label(lg2)
        self.pack8(Gr, R)
        a(f'ds_write_b128 {P(vQw)}, {P(Gr,4)}')
        lw = self.lab('qx1')
        a(f's_cmp_lg_u32 s{sPass}, 0\ns_cbranch_scc1 {lw}')
        self.set_flag(vZ, F_X0, vOneI)
        a.label(lw)
        a('s_waitcnt lgkmcnt(0)')
        a.label(lx)
        lb1 = self.lab('b1'); ld123 = self.lab('d123'); lo = self.lab('dO'); ls3 = self.lab('s3')
        a(f's_cmp_eq_u32 s{sPass}, 0\ns_cbranch_scc1 {lb1}')
        a('s_barrier\ns_barrier')
        a(f's_cmp_lg_u32 {W}, 0\ns_cbranch_scc1 {lo}\ns_branch {ls3}')
        a.label(lb1, keep=False)
        a(f's_cmp_lg_u32 {W}, 0\ns_cbranch_scc1 {ld123}')
        self.wait_flag(vZ, F_PF, 4, R, 14, sleep=1)
        a.label(ls3)
        for gq in range(4): a(f'ds_read_b128 {P(Pa+4*gq,4)}, {P(vPr)} offset:{256*gq}')
        a(f'ds_read_b128 {P(M4,4)}, {P(vMr)}\ns_waitcnt lgkmcnt(0)')
        for gq in range(4):
            a(f'v_mfma_f32_16x16x32_bf16 {P(LL+4*gq,4)}, {P(ONE4,4)}, {P(Pa+4*gq,4)}, 0')
        a(f'v_max3_f32 {P(t0)}, {P(M4)}, {P(M4+1)}, {P(M4+2)}\nv_max_f32 {P(Gr)}, {P(t0)}, {P(M4+3)}')
        for i in range(4): a(f'v_sub_f32 {P(M4+i)}, {P(M4+i)}, {P(Gr)}')
        for i in range(4): a(f'v_exp_f32 {P(M4+i)}, {P(M4+i)}')
        a(f'v_mul_f32 {P(Gr+1)}, {P(M4)}, {P(LL)}')
        for i in range(1, 4): a(f'v_fmac_f32 {P(Gr+1)}, {P(M4+i)}, {P(LL+4*i)}')
        a(f'v_mov_b32 {P(Gr+2)}, {P(vT32)}\nv_mov_b32 {P(Gr+3)}, {P(vT32)}\ns_mov_b64 exec, 15')
        self.publish(f'global_store_dwordx4 {P(vMLp)}, {P(Gr,4)}, {S2(sWS)}')
        a('s_mov_b64 exec, -1')
        lp = self.lab('ml'); ok = self.lab('ok')
        self.spin_init()
        a.label(lp)
        a(f'global_load_dwordx4 {P(Ga,4)}, {P(vMLa)}, {S2(sWS)} sc1\nglobal_load_dwordx4 {P(Gb,4)}, {P(vMLa)}, {S2(sWS)} offset:1024 sc1\ns_waitcnt vmcnt(0)')
        a(f'v_bitop3_b32 {P(t0)}, {P(Ga+2)}, {P(Gb+2)}, {P(vT32)} bitop3:0x7e\nv_cmp_ne_u32 vcc, 0, {P(t0)}\ns_cbranch_vccz {ok}')
        self.spin_tail(lp, 3)
        a.label(ok)
        self.stamp('D', 'mlgot')
        a(f'v_max_f32 {P(t0)}, {P(Ga)}, {P(Gb)}')
        for i in self.allred('v_max_f32', t0, t1): a(i)
        a(f'v_sub_f32 {P(wa)}, {P(Ga)}, {P(t0)}\nv_sub_f32 {P(wb)}, {P(Gb)}, {P(t0)}\nv_exp_f32 {P(wa)}, {P(wa)}\nv_exp_f32 {P(wb)}, {P(wb)}')
        a(f'v_mul_f32 {P(t0)}, {P(wa)}, {P(Ga+1)}\nv_fmac_f32 {P(t0)}, {P(wb)}, {P(Gb+1)}')
        for i in self.allred('v_add_f32', t0, t1): a(i)
        a(f'v_rcp_f32 {P(t0)}, {P(t0)}\nv_mul_f32 {P(wa)}, {P(wa)}, {P(t0)}\nv_mul_f32 {P(wb)}, {P(wb)}, {P(t0)}')
        lp = self.lab('op'); ok = self.lab('ok')
        self.spin_init()
        a.label(lp)
        a(f'global_load_dwordx4 {P(Ra,4)}, {P(vOPa)}, {S2(sWS)} sc1\nglobal_load_dwordx4 {P(Rb,4)}, {P(vOPa)}, {S2(sWS)} offset:1024 sc1\ns_waitcnt vmcnt(0)')
        for i in range(8): a(f'v_xor_b32 {P(Ra+i)}, {P(Ra+i)}, {P(vT8)}')
        a(f'v_or3_b32 {P(t0)}, {P(Ra)}, {P(Ra+1)}, {P(Ra+2)}\nv_or3_b32 {P(t1)}, {P(Ra+3)}, {P(Rb)}, {P(Rb+1)}\nv_or3_b32 {P(t0)}, {P(t0)}, {P(Rb+2)}, {P(Rb+3)}\nv_or_b32 {P(t0)}, {P(t0)}, {P(t1)}\nv_and_b32 {P(t0)}, 0xff, {P(t0)}\nv_cmp_ne_u32 vcc, 0, {P(t0)}')
        a(f's_cbranch_vccz {ok}')
        self.spin_tail(lp, 4)
        a.label(ok)
        self.stamp('D', 'opgot')
        for i in range(4): a(f'v_mul_f32 {P(Ra+i)}, {P(wa)}, {P(Ra+i)}')
        for i in range(4): a(f'v_fmac_f32 {P(Ra+i)}, {P(wb)}, {P(Rb+i)}')
        for s in (4, 8):
            for i in range(4): a(f'v_add_f32_dpp {P(Ra+i)}, {P(Ra+i)}, {P(Ra+i)} row_ror:{s} row_mask:0xf bank_mask:0xf')
        a(f'v_permlane16_swap_b32 {P(Ra)}, {P(Ra+1)}\nv_permlane16_swap_b32 {P(Ra+2)}, {P(Ra+3)}')
        a(f'v_add_f32 {P(Ra)}, {P(Ra)}, {P(Ra+1)}\nv_add_f32 {P(Ra+2)}, {P(Ra+2)}, {P(Ra+3)}')
        a(f'v_permlane32_swap_b32 {P(Ra)}, {P(Ra+2)}\nv_add_f32 {P(Ra)}, {P(Ra)}, {P(Ra+2)}')
        a(f'v_cvt_pk_bf16_f32 {P(t0)}, {P(Ra)}, {P(Ra)}\nv_and_or_b32 {P(Gr)}, {P(t0)}, s{sHi}, {P(vT16)}')
        self.quad_gather(Gr)
        a(f's_mov_b32 exec_lo, 0x00010001\ns_mov_b32 exec_hi, 0x00010001')
        self.publish(f'global_store_dwordx4 {P(vOp)}, {P(Gr,4)}, {S2(sWS)}')
        a('s_mov_b64 exec, -1')
        self.set_flag(vP4, F_O, vOneI)
        self.stamp('D', 'opub')
        a(f's_branch {lo}')
        a.label(ld123, keep=False)
        self.wait_flag(vZ, F_X0, 1, R, 15, sleep=4)
        a(f'ds_read_b32 {P(t0)}, {P(vZ)} offset:{F_MODE}\ns_waitcnt lgkmcnt(0)\nv_readfirstlane_b32 s{sMode}, {P(t0)}')
        a.label(lo)
        lx = self.lab('wo')
        a(f's_cmp_lg_u32 s{sPass}, 0\ns_cbranch_scc1 {lx}')
        self.wait_flag(vZ, MS_WO, 1, R, 5)
        for p in range(2):
            for i in range(4):
                a(f'ds_read_b64_tr_b16 {P(WO+2*(4*p+i),2)}, {P(vTr)} offset:{L_WO + 256*i + 128*p}')
        a('s_waitcnt lgkmcnt(0)')
        a.label(lx)
        self.wait_flag(vP4, F_O, 1, R, 6)
        a(f'v_add_u32 {P(t4)}, {WS_O}, {P(vAG)}')
        self.gather16(R, t4, vT16, 7, 'o')
        self.pack8(XP, R)
        self.gemv8(XP, WO, ACC, y, t0)
        a(f'v_and_or_b32 {P(Gr)}, {P(y)}, s{sF00}, {P(vT8)}')
        self.quad_gather(Gr)
        self.cross_publish(Gr, vYa, 0, vYL, 0, t1, vFl, F_Y, vOneI)
        self.stamp('D', 'ypub')
        lx = self.lab('w13')
        a(f's_cmp_lg_u32 s{sPass}, 0\ns_cbranch_scc1 {lx}')
        self.wait_flag(vZ, MS_W13, 2, R, 8)
        lodd = self.lab('odd'); ljn = self.lab('jn')
        a(f's_mov_b32 vcc_lo, 0x33333333\ns_mov_b32 vcc_hi, 0x33333333')
        a(f's_bitcmp1_b32 {W}, 0\ns_cbranch_scc1 {lodd}')
        for par in range(2):
            if par == 1: a.label(lodd, keep=False)
            qp = '[0,1,0,1]' if par == 0 else '[2,3,2,3]'
            for p in range(2):
                for i in range(4):
                    off = 128*i + 64*p
                    a(f'ds_read_b64_tr_b16 {P(R,2)}, {P(vTr13)} offset:{L_W1 + off}\nds_read_b64_tr_b16 {P(R+2,2)}, {P(vTr13)} offset:{L_W3 + off}\ns_waitcnt lgkmcnt(0)')
                    for h in range(2):
                        d = W13 + 2*(4*p+i) + h
                        a(f'v_mov_b32_dpp {P(R+4+h)}, {P(R+h)} quad_perm:{qp} row_mask:0xf bank_mask:0xf')
                    for h in range(2):
                        d = W13 + 2*(4*p+i) + h
                        a(f'v_cndmask_b32_dpp {P(d)}, {P(R+2+h)}, {P(R+4+h)}, vcc quad_perm:{qp} row_mask:0xf bank_mask:0xf')
            if par == 0: a(f's_branch {ljn}')
        a.label(ljn)
        for i in range(4):
            a(f'ds_read_b64_tr_b16 {P(W2+2*i,2)}, {P(vTr2)} offset:{L_W2 + 128*i}')
        a('s_waitcnt lgkmcnt(0)')
        self.colsum(W13, cs13, ACC, vOne, t0)
        a.label(lx)
        self.wait_flag(vP4, F_X1, 1, R, 9)
        a(f'v_add_u32 {P(t4)}, {WS_X1}, {P(vAG)}')
        self.gather16(R, t4, vT16, 10, 'x1')
        self.stamp('D', 'x1got')
        self.pack8(XP, R)
        lx = self.lab('noffn')
        a(f's_cmp_ge_u32 {J}, 28\ns_cbranch_scc1 {lx}')
        self.ln_gemv(XP, W13, cs13, ACC, y, s1, s2, vOne, t0, t1, t2, t3)
        a(f'v_cvt_pk_bf16_f32 {P(t0)}, {P(y)}, {P(y)}\nv_and_b32 {P(t0)}, s{sHi}, {P(t0)}')
        a(f'v_mul_f32 {P(t1)}, 0xbfb8aa3b, {P(t0)}\nv_exp_f32 {P(t1)}, {P(t1)}\nv_add_f32 {P(t1)}, 1.0, {P(t1)}\nv_rcp_f32 {P(t1)}, {P(t1)}\nv_mul_f32 {P(t1)}, {P(t0)}, {P(t1)}')
        a(f'v_cvt_pk_bf16_f32 {P(t1)}, {P(t1)}, {P(t1)}\nv_and_b32 {P(t1)}, s{sHi}, {P(t1)}')
        a(f'v_mul_f32_dpp {P(t1)}, {P(t0)}, {P(t1)} quad_perm:[2,3,2,3] row_mask:0xf bank_mask:0xf')
        a(f'v_cvt_pk_bf16_f32 {P(t1)}, {P(t1)}, {P(t1)}\nv_and_or_b32 {P(Gr)}, {P(t1)}, s{sHi}, {P(vT16)}')
        a(f'v_mov_b32_dpp {P(Gr+1)}, {P(Gr)} quad_perm:[1,1,1,1] row_mask:0xf bank_mask:0xf')
        a('s_mov_b64 exec, 1')
        self.publish(f'global_store_dwordx2 {P(vHp)}, {P(Gr,2)}, {S2(sWS)}')
        a('s_mov_b64 exec, -1')
        a.label(lx)
        lp = self.lab('h'); ok = self.lab('ok')
        a(f's_mov_b32 exec_lo, -1\ns_mov_b32 exec_hi, 0x00ffffff')
        self.spin_init()
        a.label(lp)
        a(f'global_load_dwordx4 {P(R,4)}, {P(vHa)}, {S2(sWS)} sc1\ns_waitcnt vmcnt(0)')
        a(f'v_bitop3_b32 {P(t0)}, {P(R)}, {P(R+1)}, {P(vT16)} bitop3:0x7e\nv_bitop3_b32 {P(t1)}, {P(R+2)}, {P(R+3)}, {P(vT16)} bitop3:0x7e\nv_or_b32 {P(t0)}, {P(t0)}, {P(t1)}\nv_cmp_ne_u16 vcc, 0, {P(t0)}')
        a(f's_cbranch_vccz {ok}')
        self.spin_tail(lp, 11)
        a.label(ok)
        self.stamp('D', 'hgot')
        a(f's_mov_b64 exec, -1\nv_mov_b32 {P(XP)}, 0\nv_mov_b32 {P(XP+1)}, 0\ns_mov_b32 exec_hi, 0x00ffffff')
        a(f'v_perm_b32 {P(XP)}, {P(R+1)}, {P(R)}, s{sPerm}\nv_perm_b32 {P(XP+1)}, {P(R+3)}, {P(R+2)}, s{sPerm}\ns_mov_b64 exec, -1')
        for i in range(4):
            a(f'v_mfma_f32_4x4x4_16b_bf16 {P(ACC+4*i,4)}, {P(XP,2)}, {P(W2+2*i,2)}, 0')
        a(f'v_add_f32 {P(y)}, {P(ACC)}, {P(ACC+5)}\nv_add_f32 {P(t0)}, {P(ACC+10)}, {P(ACC+15)}\nv_add_f32 {P(y)}, {P(y)}, {P(t0)}')
        for i in self.allred('v_add_f32', y, t0): a(i)
        a(f'v_and_or_b32 {P(Gr)}, {P(y)}, s{sF00}, {P(vT8)}')
        self.quad_gather(Gr)
        self.cross_publish(Gr, vYa, 0x10000, vYL, 64, t1, vFl, F_Z, vOneI)
        self.stamp('D', 'zpub')
        if self.onepass: a('s_branch L_D_end')
        a(f's_cmp_lg_u32 s{sPass}, 0\ns_cbranch_scc1 L_D_end')
        self.wait_flag(vZ, F_X2, 1, R, 12)
        a(f'v_add_u32 {P(t4)}, {WS_X2}, {P(vAG)}')
        self.gather16(R, t4, vT16, 13, 'x2')
        self.pack8(XP, R)
        a(f's_mov_b32 s{sPass}, 1\ns_add_u32 s{sT}, s{sT}, 1\nv_mov_b32 {P(vT32)}, s{sT}\nv_and_b32 {P(vT16)}, 0xffff, {P(vT32)}\nv_and_b32 {P(vT8)}, 0xff, {P(vT32)}')
        a(f'v_add_u32 {P(vYa)}, 0x20000, {P(vYa)}\nv_add_u32 {P(vYL)}, 128, {P(vYL)}\nv_mov_b32 {P(vP4)}, 4\nv_add_u32 {P(vFl)}, 32, {P(vFl)}')
        a('s_branch L_D_loop')
        a.label('L_D_end', keep=False)
        self.dump_stamps()
        a('s_endpgm')

    def quad_gather(self, Gr):
        for i in range(1, 4):
            self.a(f'v_mov_b32_dpp {P(Gr+i)}, {P(Gr)} quad_perm:[{i},{i},{i},{i}] row_mask:0xf bank_mask:0xf')
    def cross_publish(self, Gr, vYa, goff, vYL, loff, t, vFl, fl, vOneI):
        a = self.a
        a(f'v_add_u32 {P(t)}, {goff}, {P(vYa)}\nv_add_u32 {P(t+1)}, {goff + 8192}, {P(vYa)}\ns_mov_b64 exec, 1')
        a(f'global_store_dwordx4 {P(t)}, {P(Gr,4)}, {S2(sWS)} sc1\nglobal_store_dwordx4 {P(t+1)}, {P(Gr,4)}, {S2(sWS)} sc1')
        a(f'ds_write_b128 {P(vYL)}, {P(Gr,4)} offset:{loff}\nds_write_b32 {P(vFl)}, {P(vOneI)} offset:{fl}\ns_mov_b64 exec, -1')
    def mfma8(self, XP, Wt, ACC):
        L = []
        for p in range(2):
            for i in range(4):
                c = '0' if p == 0 else P(ACC+4*i, 4)
                L.append(f'v_mfma_f32_4x4x4_16b_bf16 {P(ACC+4*i,4)}, {P(XP+2*p,2)}, {P(Wt+2*(4*p+i),2)}, {c}')
        return L
    def gemv8(self, XP, Wt, ACC, y, t):
        a = self.a
        for m in self.mfma8(XP, Wt, ACC): a(m)
        a(f'v_add_f32 {P(y)}, {P(ACC)}, {P(ACC+5)}\nv_add_f32 {P(t)}, {P(ACC+10)}, {P(ACC+15)}\nv_add_f32 {P(y)}, {P(y)}, {P(t)}')
        for i in self.allred('v_add_f32', y, t): a(i)
    def colsum(self, Wt, cs, ACC, vOne, t):
        a = self.a
        a(f'v_mov_b32 {P(ACC+8)}, {P(vOne)}\nv_mov_b32 {P(ACC+9)}, {P(vOne)}')
        for k in range(8):
            c = '0' if k < 2 else P(ACC + 4*(k & 1), 4)
            a(f'v_mfma_f32_4x4x4_16b_bf16 {P(ACC+4*(k&1),4)}, {P(ACC+8,2)}, {P(Wt+2*k,2)}, {c}')
        a(f'v_add_f32 {P(cs)}, {P(ACC)}, {P(ACC+4)}')
        for i in self.allred('v_add_f32', cs, t): a(i)
    def ln_gemv(self, XP, Wt, cs, ACC, y, s1, s2, vOne, t0, t1, t2, t3):
        a = self.a
        dots = []
        for i in range(4):
            dots.append(f'v_dot2_f32_bf16 {P(s1)}, {P(XP+i)}, {P(vOne)}, ' + ('0' if i == 0 else P(s1)))
            dots.append(f'v_dot2_f32_bf16 {P(s2)}, {P(XP+i)}, {P(XP+i)}, ' + ('0' if i == 0 else P(s2)))
        self.interleave(self.mfma8(XP, Wt, ACC), dots)
        main = [f'v_add_f32 {P(y)}, {P(ACC)}, {P(ACC+5)}', f'v_add_f32 {P(t0)}, {P(ACC+10)}, {P(ACC+15)}', f'v_add_f32 {P(y)}, {P(y)}, {P(t0)}'] + self.allred('v_add_f32', y, t0)
        st = [f'v_permlane32_swap_b32 {P(s1)}, {P(s2)}', f'v_add_f32 {P(s1)}, {P(s1)}, {P(s2)}']
        st += [f'v_add_f32_dpp {P(s1)}, {P(s1)}, {P(s1)} row_ror:{s} row_mask:0xf bank_mask:0xf' for s in (1, 2, 4, 8)]
        st += [f'v_mov_b32 {P(t1)}, {P(s1)}', f'v_permlane16_swap_b32 {P(s1)}, {P(t1)}', f'v_add_f32 {P(s1)}, {P(s1)}, {P(t1)}']
        st += [f'v_mov_b32 {P(s2)}, {P(s1)}', f'v_permlane32_swap_b32 {P(s1)}, {P(s2)}']
        st += [f'v_mul_f32 {P(s1)}, 0x3b000000, {P(s1)}', f'v_mul_f32 {P(s2)}, 0x3b000000, {P(s2)}',
               f'v_fma_f32 {P(s2)}, -{P(s1)}, {P(s1)}, {P(s2)}', f'v_add_f32 {P(s2)}, 0x3727c5ac, {P(s2)}', f'v_rsq_f32 {P(s2)}, {P(s2)}']
        self.interleave(st, main)
        a(f'v_fma_f32 {P(y)}, -{P(s1)}, {P(cs)}, {P(y)}\nv_mul_f32 {P(y)}, {P(y)}, {P(s2)}')

HEADER = open(os.path.join(os.path.dirname(os.path.abspath(__file__)), 'header.txt')).read()
FOOTER = f'''.section .rodata,"a"
.p2align 6
.amdhsa_kernel {KN}
  .amdhsa_next_free_vgpr 168
  .amdhsa_next_free_sgpr 102
  .amdhsa_accum_offset 168
  .amdhsa_group_segment_fixed_size 0
  .amdhsa_kernarg_size 96
  .amdhsa_user_sgpr_count 2
  .amdhsa_user_sgpr_kernarg_segment_ptr 1
  .amdhsa_system_sgpr_workgroup_id_x 1
.end_amdhsa_kernel
'''
def generate(**kw):
    g = Gen(**kw)
    body = g.build()
    txt = HEADER + f'; @launch grid=(256,1,1) block=({64*NWAVES},1,1) lds={LDS_BYTES}\n' + body + FOOTER
    return txt, g

if __name__ == '__main__':
    import argparse
    ap = argparse.ArgumentParser()
    ap.add_argument('-o', default='cdna_kernels/' + NAME + '.s')
    ap.add_argument('--stamps', default=False); ap.add_argument('--slow', action='store_true')
    ap.add_argument('--onepass', action='store_true'); ap.add_argument('--plan', default='seq'); ap.add_argument('--depth', type=int, default=16); ap.add_argument('--depth2', type=int, default=8); ap.add_argument('--ntkv', action='store_true'); ap.add_argument('--ntw', action='store_true')
    args = ap.parse_args()
    txt, g = generate(stamps=args.stamps, force_slow=args.slow, nt_kv=args.ntkv, nt_w=args.ntw, onepass=args.onepass, depth=args.depth, depth2=args.depth2, plan=args.plan)
    open(args.o, 'w').write(txt)
    print('instructions', g.a.count, 'nops', g.a.nops, 'stamps', g.nstamp)
```

```python
import sys, os
from asmgen import Asm

NAME = 'interleave_layers__sliding_block_cached__glu_gated_swiglu__decode'
KN = NAME + '_kernel'

WS_Q, WS_ML, WS_O, WS_X1, WS_H, WS_X2 = 0x0000, 0x4000, 0x8000, 0xC000, 0x10000, 0x14000
WS_QB = 0x18000
WS_Y = 0x20000
WS_EPOCH = 0x60000
WS_OP = 0x80000
WS_STAMP = 0x200000
L_Q = 0; L_P = 1280; L_M = 2304; L_YZ = 2368; L_F = 2624
L_WQ, L_WO, L_W1, L_W3, L_W2, L_V, L_K = 4096, 20480, 36864, 45056, 53248, 61440, 94208
MS_WQ, MS_K, MS_V, MS_WO, MS_W13, MS_W2, F_X0, F_DONE = (L_F + 4*i for i in range(8))
F_PF = L_F + 32
F_O, F_X1, F_X2, F_MODE = L_F + 48, L_F + 56, L_F + 64, L_F + 68
F_Y, F_Z = L_F + 80, L_F + 96
LDS_BYTES = 126976
NA_POLL = 256
NWAVES = 9
SPIN = 1 << 17

C_SCALE = 0.08838834764831845 * 1.4426950408889634
import struct
def f2u(x): return struct.unpack('<I', struct.pack('<f', x))[0]

sX, sK, sV, sWQ, sWO, sW1, sW3, sW2, sOUT, sDBG, sWS = 4, 6, 8, 10, 12, 16, 18, 20, 22, 24, 26
sG, sJ, sW, sWL, sE, sT, sMode, sPass, sSpin = 28, 29, 30, 31, 32, 33, 34, 35, 44
sSRD = 36
sA, sB, sC, sD = 45, 46, 47, 48
sM0 = 49
sMaskA = 50
sMaskB = 52
sMaskC = 54
sHi = 56
sPerm = 57
sCs = 58
sF00 = 59
sTmp2 = 60
sTmpA = 62
sStamp0 = 64

def P(r, n=1):
    return 'v%d' % r if n == 1 else 'v[%d:%d]' % (r, r + n - 1)
def S2(r): return 's[%d:%d]' % (r, r + 1)

def make_plan(name, D1, D2):
    T = lambda t, a, b, d: [(t, i, d) for i in range(a, b)]
    def mix(x, y, k=1):
        out = []; x = list(x); y = list(y)
        while x or y:
            out += x[:k]; x = x[k:]
            out += y[:1]; y = y[1:]
        return out
    if name == 'seq':
        p = T('wq', 0, 16, 64) + T('k', 0, 32, D1) + T('v', 0, 32, D1) + T('wo', 0, 8, D1) + T('wo', 8, 16, D2) + T('w1', 0, 8, D2) + T('w3', 0, 8, D2) + T('w2', 0, 8, D2)
    elif name == 'deep':
        p = T('wq', 0, 16, 64) + T('k', 0, 16, 40) + T('k', 16, 32, 24) + T('v', 0, 32, D1) + T('wo', 0, 16, D1) + T('w1', 0, 8, D2) + T('w3', 0, 8, D2) + T('w2', 0, 8, D2)
    elif name == 'vlast':
        late = T('wo', 0, 16, D1) + T('w1', 0, 8, D1) + T('w3', 0, 8, D1) + T('w2', 0, 8, D1)
        p = T('wq', 0, 16, 64) + T('k', 0, 16, 40) + mix(T('k', 16, 32, D1) + T('v', 0, 24, D1), late, 1) + T('v', 24, 32, D1)
    elif name == 'wofirst':
        p = T('wq', 0, 16, 64) + T('k', 0, 16, 40) + mix(T('k', 16, 32, D1) + T('v', 0, 16, D1), T('wo', 0, 16, D1), 2) + T('v', 16, 32, D1) + T('w1', 0, 8, D2) + T('w3', 0, 8, D2) + T('w2', 0, 8, D2)
    else: raise ValueError(name)
    return p, 16

class Gen:
    def __init__(self, stamps=False, nt_kv=False, nt_w=False, force_slow=False, onepass=False, depth=16, depth2=8, plan='seq', dbgtime=False):
        self.dbgtime = dbgtime
        self.onepass = onepass; self.depth = depth; self.depth2 = depth2
        self.plan, self.nfirst = make_plan(plan, depth, depth2)
        self.a = Asm(); self.stamps = stamps; self.nlab = 0; self.deferred = []
        self.nt_kv = ' nt' if nt_kv else ''; self.nt_w = ' nt' if nt_w else ''
        self.force_slow = force_slow
        self.nstamp = {}
    def lab(self, p):
        self.nlab += 1; return 'L_%s_%d' % (p, self.nlab)
    def stamp(self, role, name, once=False, pro=False):
        if not self.stamps: return
        if self.stamps == 'min':
            if name not in ('start', 'end'): return
        elif name == 'end': pass
        elif name != 'start' and name != 'B1' and (self.stamps == 'pro') != pro: return
        lst = self.nstamp.setdefault(role, [])
        keys = [name + '0'] if once else [name + '0', name + '1']
        for k in keys:
            if k not in lst: lst.append(k)
        assert len(lst) <= 18, 'too many stamps'
        idx = [lst.index(k) for k in keys]
        r = lambda i: f's[{sStamp0+2*i}:{sStamp0+2*i+1}]'
        if once:
            self.a(f's_memrealtime {r(idx[0])}')
            return
        l1 = self.lab('st'); l2 = self.lab('st')
        self.a(f's_cmp_eq_u32 s{sPass}, 0\ns_cbranch_scc0 {l1}\ns_memrealtime {r(idx[0])}\ns_branch {l2}\n{l1}:\ns_memrealtime {r(idx[1])}\n{l2}:')
    def dump_stamps(self):
        if not self.stamps: return
        a = self.a
        a('s_waitcnt lgkmcnt(0)')
        a(f's_lshl_b32 s{sA}, s2, 4\ns_add_u32 s{sA}, s{sA}, s{sW}\ns_lshl_b32 s{sA}, s{sA}, 7\ns_add_u32 s{sA}, s{sA}, {WS_STAMP}')
        a('s_mov_b64 exec, 1')
        a(f'v_mov_b32 v2, s{sA}')
        for i in range(18):
            a(f'v_mov_b32 v3, s{sStamp0+2*i}\nglobal_store_dword v2, v3, {S2(sWS)} offset:{4*i}\ns_nop 0')
        a('s_waitcnt vmcnt(0)')
    def srd(self, ptr, nbytes):
        self.a(f's_mov_b32 s{sSRD}, s{ptr}\ns_and_b32 s{sSRD+1}, s{ptr+1}, 0xffff\ns_mov_b32 s{sSRD+2}, {nbytes}\ns_mov_b32 s{sSRD+3}, 0x20000')
    def publish(self, store):
        a = self.a
        if self.force_slow:
            a(store + ' sc1'); return
        ls = self.lab('slow'); lr = self.lab('ret')
        a(f's_cmp_lg_u32 s{sMode}, 0\ns_cbranch_scc1 {ls}')
        a(store)
        a.label(lr)
        self.deferred.append((ls, store + ' sc1', lr))
    def flush_deferred(self):
        for ls, st, lr in self.deferred:
            self.a.label(ls, keep=False); self.a(st); self.a(f's_branch {lr}')
        self.deferred = []
    def spin_tail(self, loop, code, sleep=0):
        a = self.a
        if sleep: a(f's_sleep {sleep}')
        a(f's_sub_u32 s{sSpin}, s{sSpin}, 1\ns_cbranch_scc0 {loop}\ns_mov_b32 s{sA}, {code}\ns_branch L_fail')
    def spin_init(self):
        self.a(f's_mov_b32 s{sSpin}, {SPIN}')
    def wait_flag(self, vaddr, off, n, vtmp, code, sleep=1, extra=None):
        a = self.a; lp = self.lab('wf'); ok = self.lab('ok')
        self.spin_init()
        a.label(lp)
        mn = {1: 'ds_read_b32', 2: 'ds_read_b64', 4: 'ds_read_b128'}[n]
        a(f'{mn} {P(vtmp, n)}, {P(vaddr)} offset:{off}')
        if extra: a(extra)
        a('s_waitcnt lgkmcnt(0)')
        if n == 2: a(f'v_and_b32 {P(vtmp)}, {P(vtmp)}, {P(vtmp+1)}')
        if n == 4: a(f'v_and_b32 {P(vtmp)}, {P(vtmp)}, {P(vtmp+1)}\nv_and_b32 {P(vtmp+2)}, {P(vtmp+2)}, {P(vtmp+3)}\nv_and_b32 {P(vtmp)}, {P(vtmp)}, {P(vtmp+2)}')
        a(f'v_cmp_eq_u32 vcc, 0, {P(vtmp)}')
        a(f's_cbranch_vccz {ok}')
        self.spin_tail(lp, code, sleep)
        a.label(ok)
    def set_flag(self, vaddr, off, vOneI):
        self.a(f's_mov_b64 exec, 1\nds_write_b32 {P(vaddr)}, {P(vOneI)} offset:{off}\ns_mov_b64 exec, -1')
    def interleave(self, *chains):
        chains = [list(c) for c in chains]
        while any(chains):
            for c in chains:
                if c: self.a(c.pop(0))
    def allred(self, op, y, t, strides=(4, 8), rows=True):
        L = []
        for s in strides:
            L.append(f'{op}_dpp {P(y)}, {P(y)}, {P(y)} row_ror:{s} row_mask:0xf bank_mask:0xf')
        if rows:
            for sw in ('v_permlane16_swap_b32', 'v_permlane32_swap_b32'):
                L += [f'v_mov_b32 {P(t)}, {P(y)}', f'{sw} {P(y)}, {P(t)}', f'{op} {P(y)}, {P(y)}, {P(t)}']
        return L
    def gather16(self, R, vaddr, vT, code, name, limit=None, onfail=None):
        a = self.a; lp = self.lab('g'); ok = self.lab('ok')
        if limit: a(f's_mov_b32 s{sSpin}, {limit}')
        else: self.spin_init()
        a.label(lp)
        a(f'global_load_dwordx4 {P(R,4)}, {P(vaddr)}, {S2(sWS)} sc1\nglobal_load_dwordx4 {P(R+4,4)}, {P(vaddr)}, {S2(sWS)} offset:16 sc1')
        a('s_waitcnt vmcnt(0)')
        e = R + 8
        a(f'v_bitop3_b32 {P(e)}, {P(R)}, {P(R+1)}, {P(vT)} bitop3:0x7e')
        a(f'v_bitop3_b32 {P(e+1)}, {P(R+2)}, {P(R+3)}, {P(vT)} bitop3:0x7e')
        a(f'v_bitop3_b32 {P(e+2)}, {P(R+4)}, {P(R+5)}, {P(vT)} bitop3:0x7e')
        a(f'v_bitop3_b32 {P(e+3)}, {P(R+6)}, {P(R+7)}, {P(vT)} bitop3:0x7e')
        a(f'v_or3_b32 {P(e)}, {P(e)}, {P(e+1)}, {P(e+2)}\nv_or_b32 {P(e)}, {P(e)}, {P(e+3)}')
        a(f'v_cmp_ne_u16 vcc, 0, {P(e)}')
        a(f's_cbranch_vccz {ok}')
        if onfail:
            a(f's_sub_u32 s{sSpin}, s{sSpin}, 1\ns_cbranch_scc0 {lp}\ns_branch {onfail}')
        else:
            self.spin_tail(lp, code)
        a.label(ok)
    def pack8(self, XP, R):
        for i in range(4):
            self.a(f'v_perm_b32 {P(XP+i)}, {P(R+2*i+1)}, {P(R+2*i)}, s{sPerm}')

    def build(self):
        a = self.a
        a.raw(f'.amdgcn_target "amdgcn-amd-amdhsa--gfx950"\n.text\n.globl {KN}\n.p2align 8\n.type {KN},@function\n{KN}:')
        a('s_cmp_ge_u32 s2, 256\ns_cbranch_scc1 L_end')
        a(f's_load_dwordx16 s[4:19], s[0:1], 0\ns_load_dwordx8 s[20:27], s[0:1], 64')
        a(f'v_lshrrev_b32 v2, 6, v0\nv_and_b32 v1, 63, v0\ns_and_b32 s{sG}, s2, 7\ns_lshr_b32 s{sJ}, s2, 3')
        a(f'v_readfirstlane_b32 s{sW}, v2')
        a(f's_mov_b32 s{sPass}, 0')
        if self.stamps:
            for i in range(18): a(f's_mov_b32 s{sStamp0+2*i}, 0')
        a(f's_and_b32 s{sWL}, s{sW}, 3')
        a(f's_cmp_eq_u32 s{sW}, 8\ns_cbranch_scc0 L_AD')
        self.build_L()
        a.label('L_AD', keep=False)
        a(f's_cmp_ge_u32 s{sW}, 4\ns_cbranch_scc1 L_D')
        self.build_A()
        self.build_D()
        self.flush_deferred()
        a.label('L_fail', keep=False)
        a(f's_mov_b64 exec, 1\nv_mov_b32 v2, s{sA}\nv_mov_b32 v3, 0\nglobal_store_dword v3, v2, {S2(sDBG)}\ns_waitcnt vmcnt(0)')
        a.label('L_end')
        a('s_endpgm')
        return a.text()

    def build_L(self):
        a = self.a
        vl = 1
        vWQ, vK0, vV0, vV1, vWo, vFo, vW2o, vOneI, vZ, t0, t1 = 2, 3, 7, 8, 9, 10, 11, 12, 13, 14, 15
        G, J = f's{sG}', f's{sJ}'
        self.stamp('L', 'start', once=True)
        a(f'v_mov_b32 {P(vZ)}, 0\nv_lshlrev_b32 {P(t0)}, 2, {P(vl)}\nds_write_b32 {P(t0)}, {P(vZ)} offset:{L_F}\nv_mov_b32 {P(vOneI)}, 1')
        a(f'v_lshrrev_b32 {P(t0)}, 1, {P(vl)}\nv_and_b32 {P(t1)}, 1, {P(vl)}\nv_lshlrev_b32 {P(t1)}, 4, {P(t1)}\ns_lshl_b32 s{sA}, {G}, 10\ns_lshl_b32 s{sB}, {J}, 5\ns_add_u32 s{sA}, s{sA}, s{sB}')
        a(f'v_lshl_add_u32 {P(vWQ)}, {P(t0)}, 13, {P(t1)}\nv_add_u32 {P(vWQ)}, s{sA}, {P(vWQ)}')
        a(f'v_lshl_add_u32 {P(vW2o)}, {P(t0)}, 10, {P(t1)}\nv_add_u32 {P(vW2o)}, s{sB}, {P(vW2o)}')
        a('s_waitcnt lgkmcnt(0)')
        self.stamp('L', 'ka', once=True, pro=True)
        seq = []
        issued = [0]
        ms = []
        def dma(voff, soff_expr, lds, nt, depth, srd):
            if issued[0] >= depth: a(f's_waitcnt vmcnt({depth-1})')
            for e, fl in list(ms):
                if issued[0] - depth >= e:
                    a(f's_mov_b64 exec, 1\nds_write_b32 {P(vZ)}, {P(vOneI)} offset:{fl}\ns_mov_b64 exec, -1'); ms.remove((e, fl))
                    self.stamp('L', 'ms%d' % fl, once=True, pro=True)
            a(soff_expr)
            a(f's_mov_b32 m0, {lds}')
            a(f'buffer_load_dwordx4 {P(voff)}, s[{srd}:{srd+3}], s{sD} offen{nt} lds')
            issued[0] += 1
        def setup_rest():
            a(f'v_lshrrev_b32 {P(t0)}, 4, {P(vl)}\nv_and_b32 {P(t1)}, 15, {P(vl)}\nv_xor_b32 {P(vK0)}, {P(t1)}, {P(t0)}\nv_lshlrev_b32 {P(vK0)}, 4, {P(vK0)}\nv_lshl_add_u32 {P(vK0)}, {P(t0)}, 8, {P(vK0)}')
            for i in range(1, 4): a(f'v_xor_b32 {P(vK0+i)}, {64*i}, {P(vK0)}')
            a(f'v_lshlrev_b32 {P(vV0)}, 1, {P(t0)}\nv_xor_b32 {P(t1)}, {P(t1)}, {P(vV0)}\nv_lshlrev_b32 {P(t1)}, 4, {P(t1)}\nv_lshl_add_u32 {P(vV0)}, {P(t0)}, 8, {P(t1)}\nv_xor_b32 {P(vV1)}, 128, {P(vV0)}')
            a(f'v_lshrrev_b32 {P(t0)}, 1, {P(vl)}\nv_and_b32 {P(t0)}, 3, {P(t0)}\nv_lshlrev_b32 {P(t0)}, 7, {P(t0)}')
            a(f'v_lshrrev_b32 {P(t1)}, 5, {P(vl)}\nv_lshl_add_u32 {P(t0)}, {P(t1)}, 2, {P(t0)}')
            a(f'v_lshrrev_b32 {P(t1)}, 3, {P(vl)}\nv_and_b32 {P(t1)}, 3, {P(t1)}\nv_add_u32 {P(t0)}, {P(t0)}, {P(t1)}\nv_lshlrev_b32 {P(t0)}, 10, {P(t0)}')
            a(f'v_and_b32 {P(t1)}, 1, {P(vl)}\nv_lshlrev_b32 {P(t1)}, 4, {P(t1)}\ns_lshl_b32 s{sB}, {J}, 5\nv_add3_u32 {P(vWo)}, {P(t0)}, {P(t1)}, s{sB}')
            a(f's_movk_i32 s{sB}, 3584\nv_mul_lo_u32 {P(vFo)}, {P(vl)}, s{sB}\ns_mul_i32 s{sB}, {G}, 448\ns_lshl_b32 s{sC}, {J}, 4\ns_add_u32 s{sB}, s{sB}, s{sC}')
            a(f's_cmp_ge_u32 {J}, 28\ns_cselect_b32 s{sB}, 0x7f000000, s{sB}\nv_add_u32 {P(vFo)}, s{sB}, {P(vFo)}')
        SR = {'wq': 36, 'k': 40, 'v': 52, 'wo': 56, 'w1': 60, 'w3': 4, 'w2': 8}
        def mk(name, ptr, nb):
            r = SR[name]
            a(f's_mov_b32 s{r}, s{ptr}\ns_and_b32 s{r+1}, s{ptr+1}, 0xffff\ns_mov_b32 s{r+2}, {nb}\ns_mov_b32 s{r+3}, 0x20000')
        sKV, sWOb, sW2b = 45, 46, 47
        tiles = {
            'wq': [(vWQ, f's_mov_b32 s{sD}, {n*262144}', L_WQ + 1024*n, self.nt_w) for n in range(16)],
            'k': [(vK0 + (n & 3), f's_add_u32 s{sD}, s{sKV}, {1024*n}', L_K + 1024*n, self.nt_kv) for n in range(32)],
            'v': [(vV1 if n & 1 else vV0, f's_add_u32 s{sD}, s{sKV}, {1024*n}', L_V + 1024*n, self.nt_kv) for n in range(32)],
            'wo': [(vWo, f's_add_u32 s{sD}, s{sWOb}, {8192*n}', L_WO + 1024*n, self.nt_w) for n in range(16)],
            'w1': [(vFo, f's_mov_b32 s{sD}, {229376*n}', L_W1 + 1024*n, self.nt_w) for n in range(8)],
            'w3': [(vFo, f's_mov_b32 s{sD}, {229376*n}', L_W3 + 1024*n, self.nt_w) for n in range(8)],
            'w2': [(vW2o, f's_add_u32 s{sD}, s{sW2b}, {32768*n}', L_W2 + 1024*n, self.nt_w) for n in range(8)],
        }
        plan = self.plan
        assert sorted((t, i) for t, i, d in plan) == sorted((t, i) for t in tiles for i in range(len(tiles[t])))
        last = {}
        for pos, (t, i, d) in enumerate(plan): last[t] = pos
        msdef = [(last['wq'], MS_WQ), (last['k'], MS_K), (last['v'], MS_V), (last['wo'], MS_WO), (max(last['w1'], last['w3']), MS_W13), (last['w2'], MS_W2)]
        ms.extend(msdef)
        mk('wq', sWQ, 4194304)
        nfirst = self.nfirst
        def issue(pos):
            t, i, d = plan[pos]
            voff, so, lds, nt = tiles[t][i]
            dma(voff, so, lds, nt, d, SR[t])
        for pos in range(nfirst):
            assert plan[pos][0] == 'wq'
            issue(pos)
        setup_rest()
        mk('k', sK, 67108864); mk('v', sV, 67108864); mk('wo', sWO, 4194304); mk('w1', sW1, 1835008); mk('w3', sW3, 1835008); mk('w2', sW2, 1835008)
        a(f's_lshl_b32 s{sKV}, {G}, 23\ns_lshl_b32 s{sB+0}, {J}, 15')
        a(f's_add_u32 s{sKV}, s{sKV}, s{sB+0}')
        a(f's_add_u32 s{sKV}, s{sKV}, 7340032\ns_lshl_b32 s{sWOb}, {G}, 19\ns_mul_i32 s{sW2b}, {G}, {224*1024}')
        a('s_barrier')
        for pos in range(nfirst, len(plan)): issue(pos)
        n = len(plan)
        for e, fl in sorted(ms):
            a(f's_waitcnt vmcnt({n - 1 - e})\ns_mov_b64 exec, 1\nds_write_b32 {P(vZ)}, {P(vOneI)} offset:{fl}\ns_mov_b64 exec, -1')
            self.stamp('L', 'ms%d' % fl, once=True, pro=True)
        a('s_waitcnt lgkmcnt(0)')
        self.dump_stamps()
        a('s_endpgm')

    def build_A(self):
        a = self.a
        vl = 1
        vKo, vOneI, vP4, vP32 = 2, 3, 4, 5
        vQa, vPw, vPr, vMw, vMr, vVa0, vVa1, vOPa = 8, 9, 10, 11, 12, 13, 14, 15
        vT32, vT16, vT8, vZ, vYa, vYL, vXa, vX0, vX1 = 16, 17, 18, 19, 20, 21, 22, 23, 24
        t0, t1, t2, t3 = 25, 26, 27, 28
        vOut = 29
        K, V, Q, Sx, Pw, D, M4, AL = 32, 64, 96, 112, 120, 124, 156, 160
        Pa, O = Q, Sx
        R = 164
        G, J, W = f's{sG}', f's{sJ}', f's{sWL}'
        self.stamp('A', 'start', once=True)
        if self.dbgtime: a('s_memrealtime s[96:97]')
        a('s_waitcnt lgkmcnt(0)')
        a(f's_load_dword s{sE}, {S2(sWS)}, {WS_EPOCH}')
        a(f'v_mov_b32 {P(vOneI)}, 1\nv_mov_b32 {P(vP4)}, 0\nv_mov_b32 {P(vP32)}, 0')
        a(f'v_and_b32 {P(t0)}, 3, {P(vl)}\nv_lshrrev_b32 {P(t2)}, 4, {P(vl)}\nv_mul_u32_u24 {P(t1)}, 320, {P(t0)}\nv_lshl_add_u32 {P(t1)}, {P(t2)}, 4, {P(t1)}\nv_add_u32 {P(vQa)}, {L_Q}, {P(t1)}')
        a(f'v_lshlrev_b32 {P(t1)}, 6, {P(t2)}\nv_lshl_add_u32 {P(t1)}, {P(t0)}, 4, {P(t1)}\nv_add_u32 {P(vPr)}, {L_P}, {P(t1)}\ns_lshl_b32 s{sB}, {W}, 8\nv_add_u32 {P(vPw)}, s{sB}, {P(vPr)}')
        a(f'v_lshlrev_b32 {P(t1)}, 4, {P(t0)}\nv_add_u32 {P(vMr)}, {L_M}, {P(t1)}\ns_lshl_b32 s{sB}, {W}, 2\nv_add_u32 {P(vMw)}, s{sB}, {P(vMr)}')
        a(f'v_and_b32 {P(t1)}, 15, {P(vl)}\nv_lshrrev_b32 {P(t1)}, 2, {P(t1)}')
        a(f'v_and_b32 {P(t3)}, 1, {P(t2)}\nv_lshlrev_b32 {P(t3)}, 3, {P(t3)}\nv_lshl_add_u32 {P(t3)}, {P(t1)}, 1, {P(t3)}')
        a(f'v_lshl_add_u32 {P(t1)}, {P(t2)}, 2, {P(t1)}\nv_lshlrev_b32 {P(t1)}, 8, {P(t1)}')
        a(f'v_lshrrev_b32 {P(vVa1)}, 1, {P(t0)}\ns_lshl_b32 s{sB}, {W}, 2\nv_add_u32 {P(vVa1)}, s{sB}, {P(vVa1)}\nv_xor_b32 {P(vVa1)}, {P(vVa1)}, {P(t3)}')
        a(f'v_lshl_add_u32 {P(t1)}, {P(vVa1)}, 4, {P(t1)}\nv_and_b32 {P(t3)}, 1, {P(t0)}\nv_lshl_add_u32 {P(t1)}, {P(t3)}, 3, {P(t1)}')
        a(f'v_add_u32 {P(vVa0)}, {L_V}, {P(t1)}\nv_xor_b32 {P(vVa1)}, 32, {P(t1)}\nv_add_u32 {P(vVa1)}, {L_V}, {P(vVa1)}')
        a(f'v_and_b32 {P(t1)}, 15, {P(vl)}\nv_xor_b32 {P(t3)}, {P(t1)}, {P(t2)}\nv_lshlrev_b32 {P(t3)}, 4, {P(t3)}\nv_lshl_add_u32 {P(vKo)}, {P(t1)}, 8, {P(t3)}')
        a(f's_lshl_b32 s{sB}, {G}, 16\ns_lshl_b32 s{sC}, {W}, 14\ns_add_u32 s{sB}, s{sB}, s{sC}\ns_lshl_b32 s{sC}, {J}, 6\ns_add_u32 s{sB}, s{sB}, s{sC}\ns_add_u32 s{sB}, s{sB}, {WS_OP}')
        a(f'v_lshlrev_b32 {P(t1)}, 11, {P(t2)}\nv_lshl_add_u32 {P(t1)}, {P(t0)}, 4, {P(t1)}\nv_add_u32 {P(vOPa)}, s{sB}, {P(t1)}')
        a(f'v_and_b32 {P(t1)}, 15, {P(vl)}\nv_lshrrev_b32 {P(t1)}, 1, {P(t1)}\ns_lshl_b32 s{sB}, {J}, 3\nv_add_u32 {P(t1)}, s{sB}, {P(t1)}')
        a(f'v_lshrrev_b32 {P(t3)}, 6, {P(t1)}\nv_lshlrev_b32 {P(t3)}, 14, {P(t3)}\nv_and_b32 {P(t1)}, 63, {P(t1)}\nv_lshl_add_u32 {P(t1)}, {P(t1)}, 7, {P(t3)}')
        a(f'v_and_b32 {P(t3)}, 1, {P(vl)}\nv_lshl_add_u32 {P(t3)}, {P(t2)}, 1, {P(t3)}\nv_lshlrev_b32 {P(t3)}, 3, {P(t3)}')
        a(f's_lshl_b32 s{sB}, {W}, 13\ns_add_u32 s{sB}, s{sB}, {WS_Y}\nv_add3_u32 {P(vYa)}, {P(t1)}, {P(t3)}, s{sB}')
        a(f'v_add_u32 {P(vYL)}, {L_YZ}, {P(t3)}')
        a(f's_lshl_b32 s{sB}, {G}, 11\ns_lshl_b32 s{sC}, {J}, 6\ns_add_u32 s{sB}, s{sB}, s{sC}\nv_add_u32 {P(vXa)}, s{sB}, {P(t3)}')
        a(f's_lshl_b32 s{sB}, {J}, 5\nv_lshrrev_b32 {P(t3)}, 1, {P(t3)}\nv_add_u32 {P(vOut)}, s{sB}, {P(t3)}')
        a(f'global_load_dword {P(vX1)}, {P(vOut)}, {S2(sX)}')
        a(f'v_mov_b32 {P(vZ)}, 0')
        a(f's_mov_b32 s{sHi}, 0xffff0000\ns_mov_b32 s{sCs}, {f2u(C_SCALE)}\ns_mov_b32 s{sF00}, 0xffffff00')
        a(f's_mov_b32 s{sMaskB}, 0x00030003\ns_mov_b32 s{sMaskB+1}, 0x00030003\ns_lshl_b32 s{sA}, {G}, 1\ns_lshl_b64 {S2(sMaskA)}, {S2(sMaskB)}, s{sA}')
        a(f's_mov_b32 s{sMaskC}, 0x000f000f\ns_mov_b32 s{sMaskC+1}, 0x000f000f')
        a('s_barrier')
        a('s_waitcnt lgkmcnt(0)')
        a(f's_add_u32 s{sT}, s{sE}, 1\nv_mov_b32 {P(vT32)}, s{sT}\nv_and_b32 {P(vT16)}, 0xffff, {P(vT32)}\nv_and_b32 {P(vT8)}, 0xff, {P(vT32)}')
        self.wait_flag(vZ, MS_K, 1, t0, 30, sleep=2)
        self.stamp('A', 'Kland', once=True, pro=True)
        a(f's_lshl_b32 s{sA}, s{sWL}, 13\ns_add_u32 s{sA}, s{sA}, {L_K}')
        for kk in range(4):
            a(f'v_xor_b32 {P(t1)}, {64*kk}, {P(vKo)}\nv_add_u32 {P(t1)}, s{sA}, {P(t1)}')
            for T in range(2):
                a(f'ds_read_b128 {P(K+16*T+4*kk,4)}, {P(t1)} offset:{4096*T}')
        a('s_waitcnt vmcnt(0)')
        a(f'v_lshlrev_b32 {P(vX0)}, 16, {P(vX1)}\nv_and_b32 {P(vX1)}, s{sHi}, {P(vX1)}')
        self.wait_flag(vZ, F_X0, 1, t0, 31, sleep=1)
        a(f'ds_read_b32 {P(t0)}, {P(vZ)} offset:{F_MODE}\ns_waitcnt lgkmcnt(0)\nv_readfirstlane_b32 s{sMode}, {P(t0)}')
        a('s_branch L_A_q')
        a.label('L_A_loop', keep=False)
        a('s_barrier')
        a.label('L_A_q')
        self.stamp('A', 'X')
        self.stamp('A', 'X', pro=True)
        for kk in range(4):
            a(f'ds_read_b128 {P(Q+4*kk,4)}, {P(vQa)} offset:{64*kk}')
        a('s_waitcnt lgkmcnt(0)')
        for kk in range(4):
            for T in range(2):
                c = '0' if kk == 0 else P(Sx+4*T, 4)
                a(f'v_mfma_f32_16x16x32_bf16 {P(Sx+4*T,4)}, {P(K+16*T+4*kk,4)}, {P(Q+4*kk,4)}, {c}')
        a(f'v_max3_f32 {P(t0)}, {P(Sx)}, {P(Sx+1)}, {P(Sx+2)}\nv_max3_f32 {P(t1)}, {P(Sx+4)}, {P(Sx+5)}, {P(Sx+6)}')
        a(f'v_max3_f32 {P(t0)}, {P(t0)}, {P(Sx+3)}, {P(Sx+7)}\nv_max_f32 {P(t0)}, {P(t0)}, {P(t1)}')
        for i in self.allred('v_max_f32', t0, t1, strides=()): a(i)
        a(f'v_mul_f32 {P(t0)}, s{sCs}, {P(t0)}')
        for i in range(8): a(f'v_fma_f32 {P(Sx+i)}, {P(Sx+i)}, s{sCs}, -{P(t0)}')
        for i in range(8): a(f'v_exp_f32 {P(Sx+i)}, {P(Sx+i)}')
        for i in range(4): a(f'v_cvt_pk_bf16_f32 {P(Pw+i)}, {P(Sx+2*i)}, {P(Sx+2*i+1)}')
        a(f's_mov_b64 exec, {S2(sMaskC)}\nds_write_b128 {P(vPw)}, {P(Pw,4)}\ns_mov_b64 exec, 15\nds_write_b32 {P(vMw)}, {P(t0)}\ns_mov_b64 exec, -1')
        lp0 = self.lab('pp0'); lp1 = self.lab('pp1')
        a(f's_cmp_eq_u32 s{sPass}, 0\ns_cbranch_scc1 {lp0}')
        a('s_waitcnt lgkmcnt(0)\ns_barrier')
        self.stamp('A', 'P')
        for gq in range(4):
            a(f'ds_read_b128 {P(Pa+4*gq,4)}, {P(vPr)} offset:{256*gq}')
        a(f'ds_read_b128 {P(M4,4)}, {P(vMr)}')
        a(f's_branch {lp1}')
        a.label(lp0, keep=False)
        a(f's_lshl_b32 s{sA}, s{sWL}, 2\nv_mov_b32 {P(t1)}, s{sA}')
        self.set_flag(t1, F_PF, vOneI)
        self.wait_flag(vZ, F_PF, 4, M4, 32, sleep=0)
        self.stamp('A', 'P')
        for gq in range(4):
            a(f'ds_read_b128 {P(Pa+4*gq,4)}, {P(vPr)} offset:{256*gq}')
        a(f'ds_read_b128 {P(M4,4)}, {P(vMr)}')
        self.wait_flag(vZ, MS_V, 1, t0, 33, sleep=0)
        self.stamp('A', 'Vland', once=True)
        self.stamp('A', 'Vland', once=True, pro=True)
        for t in range(2):
            for gq in range(4):
                for hh in range(2):
                    r = V + 16*t + 4*gq + 2*hh
                    a(f'ds_read_b64_tr_b16 {P(r,2)}, {P(vVa0 if t == 0 else vVa1)} offset:{8192*gq + 4096*hh}')
        a.label(lp1)
        a('s_waitcnt lgkmcnt(0)')
        mf = []
        for t in range(2):
            for gq in range(4):
                mf.append(f'v_mfma_f32_16x16x32_bf16 {P(D+16*t+4*gq,4)}, {P(V+16*t+4*gq,4)}, {P(Pa+4*gq,4)}, 0')
        al = [f'v_max3_f32 {P(t0)}, {P(M4)}, {P(M4+1)}, {P(M4+2)}', f'v_max_f32 {P(t0)}, {P(t0)}, {P(M4+3)}']
        al += [f'v_sub_f32 {P(AL+i)}, {P(M4+i)}, {P(t0)}' for i in range(4)]
        al += [f'v_exp_f32 {P(AL+i)}, {P(AL+i)}' for i in range(4)]
        for i in range(8):
            a(mf[i])
            if al: a(al.pop(0))
        for x in al: a(x)
        for t in range(2):
            for gq in range(4):
                d = D + 16*t + 4*gq
                alp = AL + (gq & 2); hi = gq & 1
                sel = f'op_sel:[0,{hi},0] op_sel_hi:[1,{hi},1]'
                for h2 in range(2):
                    o = O + 4*t + 2*h2
                    if gq == 0:
                        a(f'v_pk_mul_f32 {P(o,2)}, {P(d+2*h2,2)}, {P(alp,2)} op_sel:[0,{hi}] op_sel_hi:[1,{hi}]')
                    else:
                        a(f'v_pk_fma_f32 {P(o,2)}, {P(d+2*h2,2)}, {P(alp,2)}, {P(o,2)} {sel}')
        for i in range(8): a(f'v_and_or_b32 {P(O+i)}, {P(O+i)}, s{sF00}, {P(vT8)}')
        a(f'v_add_u32 {P(t1)}, 8192, {P(vOPa)}')
        a(f's_mov_b64 exec, {S2(sMaskC)}')
        self.publish(f'global_store_dwordx4 {P(vOPa)}, {P(O,4)}, {S2(sWS)}')
        self.publish(f'global_store_dwordx4 {P(t1)}, {P(O+4,4)}, {S2(sWS)}')
        a('s_mov_b64 exec, -1')
        self.stamp('A', 'OPpub')
        lnext = self.lab('anext')
        a(f's_cmp_ge_u32 s{sWL}, 2\ns_cbranch_scc1 {lnext}')
        self.colgather(R, vYa, 0, vYL, 0, vT8, vP32, F_Y, 20)
        self.stamp('A', 'S5got')
        self.resid_publish(R, vX0, vX1, vXa, WS_X1, vT16, t0, t1, t2)
        self.set_flag(vP4, F_X1, vOneI)
        self.stamp('A', 'S5pub')
        lfin = self.lab('afin')
        a(f's_cmp_lg_u32 s{sPass}, 0\ns_cbranch_scc1 {lfin}')
        self.colgather(R, vYa, 0x10000, vYL, 64, vT8, vP32, F_Z, 22)
        self.stamp('A', 'S8got')
        self.resid_publish(R, vX0, vX1, vXa, WS_X2, vT16, t0, t1, t2)
        self.set_flag(vZ, F_X2, vOneI)
        a.label(lnext)
        if self.onepass: a('s_branch L_A_end')
        a(f's_cmp_lg_u32 s{sPass}, 0\ns_cbranch_scc1 L_A_end')
        a(f's_mov_b32 s{sPass}, 1\ns_add_u32 s{sT}, s{sT}, 1\nv_mov_b32 {P(vT32)}, s{sT}\nv_and_b32 {P(vT16)}, 0xffff, {P(vT32)}\nv_and_b32 {P(vT8)}, 0xff, {P(vT32)}')
        a(f'v_add_u32 {P(vYa)}, 0x20000, {P(vYa)}\nv_add_u32 {P(vYL)}, 128, {P(vYL)}\nv_mov_b32 {P(vP4)}, 4\nv_mov_b32 {P(vP32)}, 32')
        a('s_branch L_A_loop')
        a.label(lfin, keep=False)
        a(f's_cmp_lg_u32 s{sG}, 0\ns_cbranch_scc1 L_A_end')
        self.colgather(R, vYa, 0x10000, vYL, 64, vT8, vP32, F_Z, 24, abort=(vZ, F_DONE, t3, 'L_A_end'))
        self.stamp('A', 'S8got')
        a(f'v_add_f32 {P(R)}, {P(R)}, {P(vX0)}\nv_add_f32 {P(R+1)}, {P(R+1)}, {P(vX1)}\nv_cvt_pk_bf16_f32 {P(t0)}, {P(R)}, {P(R+1)}')
        a(f's_mov_b64 exec, {S2(sMaskB)}\nglobal_store_dword {P(vOut)}, {P(t0)}, {S2(sOUT)}\ns_mov_b64 exec, -1')
        self.stamp('A', 'end', once=True)
        if self.dbgtime:
            a(f's_memrealtime s[98:99]\ns_waitcnt lgkmcnt(0)\ns_sub_u32 s98, s98, s96\ns_lshl_b32 s{sA}, s{sJ}, 2\ns_and_b32 s{sA}, s{sA}, 63\nv_mov_b32 {P(t1)}, s{sA}\nv_mov_b32 {P(t2)}, s98\ns_mov_b64 exec, 1\nglobal_store_dword {P(t1)}, {P(t2)}, {S2(sDBG)}\ns_mov_b64 exec, -1')
        self.set_flag(vZ, F_DONE, vOneI)
        a(f's_cmp_lg_u32 s2, 0\ns_cbranch_scc1 L_A_end')
        a(f's_mov_b64 exec, 1\nv_mov_b32 {P(t1)}, {WS_EPOCH}\nglobal_store_dword {P(t1)}, {P(vT32)}, {S2(sWS)}')
        a.label('L_A_end', keep=False)
        a('s_mov_b64 exec, -1')
        self.dump_stamps()
        a('s_endpgm')

    def colgather(self, R, vYa, goff, vYL, loff, vT8, vP32, fl4, code, abort=None):
        a = self.a
        self.wait_flag(vP32, fl4, 4, R + 4 - 4 + 0 if False else 124, code, sleep=1, extra=f'ds_read_b64 {P(R,2)}, {P(vYL)} offset:{loff}')
        a(f'v_xor_b32 {P(R)}, {P(R)}, {P(vT8)}\nv_xor_b32 {P(R+1)}, {P(R+1)}, {P(vT8)}')
        a(f's_not_b64 exec, {S2(sMaskA)}')
        if goff: a(f'v_add_u32 {P(R+3)}, {goff}, {P(vYa)}')
        addr = R + 3 if goff else vYa
        lp = self.lab('cgr'); ok = self.lab('ok')
        self.spin_init()
        a.label(lp)
        a(f'global_load_dwordx2 {P(R,2)}, {P(addr)}, {S2(sWS)} sc1')
        if abort:
            vZ, fl, tmp, lab = abort
            a(f'ds_read_b32 {P(tmp)}, {P(vZ)} offset:{fl}\ns_waitcnt lgkmcnt(0)\nv_cmp_ne_u32 vcc, 0, {P(tmp)}\ns_cbranch_vccnz {lab}')
        a('s_waitcnt vmcnt(0)')
        a(f'v_xor_b32 {P(R)}, {P(R)}, {P(vT8)}\nv_xor_b32 {P(R+1)}, {P(R+1)}, {P(vT8)}\nv_or_b32 {P(R+2)}, {P(R)}, {P(R+1)}\nv_and_b32 {P(R+2)}, 0xff, {P(R+2)}\nv_cmp_ne_u32 vcc, 0, {P(R+2)}')
        a(f's_cbranch_vccz {ok}')
        self.spin_tail(lp, code + 1)
        a.label(ok)
        a('s_mov_b64 exec, -1')
        for s in (2, 4, 8):
            for r in (R, R + 1):
                a(f'v_add_f32_dpp {P(r)}, {P(r)}, {P(r)} row_ror:{s} row_mask:0xf bank_mask:0xf')

    def resid_publish(self, R, vX0, vX1, vXa, region, vT16, t0, t1, t2):
        a = self.a
        a(f'v_add_f32 {P(R)}, {P(R)}, {P(vX0)}\nv_add_f32 {P(R+1)}, {P(R+1)}, {P(vX1)}\nv_cvt_pk_bf16_f32 {P(t2)}, {P(R)}, {P(R+1)}')
        a(f'v_add_u32 {P(R+3)}, {region}, {P(vXa)}')
        a(f'v_lshl_or_b32 {P(R)}, {P(t2)}, 16, {P(vT16)}\nv_and_or_b32 {P(R+1)}, {P(t2)}, s{sHi}, {P(vT16)}')
        a(f's_mov_b64 exec, {S2(sMaskB)}')
        self.publish(f'global_store_dwordx2 {P(R+3)}, {P(R,2)}, {S2(sWS)}')
        a('s_mov_b64 exec, -1')
        a(f'v_lshlrev_b32 {P(vX0)}, 16, {P(t2)}\nv_and_b32 {P(vX1)}, s{sHi}, {P(t2)}')

    def build_D(self):
        a = self.a
        vl = 1
        vTr, vTr13, vTr2 = 2, 3, 4
        vAG, vPub, vYa, vYL, vHa, vHp = 5, 6, 7, 8, 9, 10
        vT32, vT16, vT8, vZ, vOne = 11, 12, 13, 14, 15
        vQw, vPr, vMr, vMLa, vMLp, vOPa, vOp, vT16x = 16, 17, 18, 19, 20, 21, 22, 23
        t0, t1, t2, t3, t4 = 24, 25, 26, 27, 28
        vDum = 30
        WQ, WO, W13, W2 = 32, 48, 64, 80
        csq, cs13 = 88, 89
        XP = 92; R = 96
        ACC = 108
        y, s1, s2 = 124, 125, 126
        Gr = 128
        ONE4 = 132
        Pa = 136; M4 = 152; LL = ACC
        Ga, Gb = 156, 160
        wa, wb = 164, 165
        Ra, Rb = R, R + 4
        vOneI, vP4, vFl = 29, 31, 90
        G, J, W = f's{sG}', f's{sJ}', f's{sWL}'
        a.label('L_D', keep=False)
        self.stamp('D', 'start', once=True)
        a('s_waitcnt lgkmcnt(0)')
        self.stamp('D', 'ka', once=True, pro=True)
        a(f's_load_dword s{sE}, {S2(sWS)}, {WS_EPOCH}')
        lx = self.lab('d2')
        a(f's_cmp_lg_u32 {W}, 2\ns_cbranch_scc1 {lx}')
        a(f's_lshl_b32 s{sA}, {G}, 11\ns_and_b32 s{sB}, {J}, 15\ns_lshl_b32 s{sB}, s{sB}, 7\ns_add_u32 s{sA}, s{sA}, s{sB}\nv_lshlrev_b32 {P(t0)}, 14, {P(vl)}\nv_add_u32 {P(t0)}, s{sA}, {P(t0)}')
        a(f's_mov_b64 exec, 63\nglobal_load_dword {P(vDum)}, {P(t0)}, {S2(sWS)} sc1\ns_mov_b64 exec, -1')
        a.label(lx)
        a(f'v_lshlrev_b32 {P(t0)}, 4, {P(vl)}\nglobal_load_dwordx4 {P(XP,4)}, {P(t0)}, {S2(sX)}')
        lx = self.lab('d0')
        a(f's_cmp_lg_u32 {W}, 0\ns_cbranch_scc1 {lx}')
        a(f's_getpc_b64 {S2(sTmp2)}')
        a.label('L_pc')
        a(f's_sub_u32 s{sTmp2}, s{sTmp2}, L_pc-{KN}\ns_subb_u32 s{sTmp2+1}, s{sTmp2+1}, 0')
        a(f's_and_b32 s{sA}, {J}, 1\ns_lshl_b32 s{sA}, s{sA}, 13\nv_lshlrev_b32 {P(t0)}, 6, {P(vl)}\nv_add_u32 {P(t0)}, s{sA}, {P(t0)}\nv_add_u32 {P(t1)}, 4096, {P(t0)}')
        a(f's_mov_b32 s{sA}, L_end-{KN}\nv_min_u32 {P(t0)}, s{sA}, {P(t0)}\nv_min_u32 {P(t1)}, s{sA}, {P(t1)}')
        a(f'global_load_dword {P(vDum)}, {P(t0)}, {S2(sTmp2)}\nglobal_load_dword {P(vDum)}, {P(t1)}, {S2(sTmp2)}')
        a.label(lx)
        a(f'v_lshrrev_b32 {P(t0)}, 4, {P(vl)}\nv_and_b32 {P(t1)}, 3, {P(vl)}\nv_and_b32 {P(t2)}, 15, {P(vl)}\nv_lshrrev_b32 {P(t2)}, 2, {P(t2)}')
        a(f's_lshl_b32 s{sA}, {W}, 3')
        a(f'v_lshlrev_b32 {P(t3)}, 12, {P(t0)}\nv_lshl_add_u32 {P(t3)}, {P(t1)}, 10, {P(t3)}\nv_lshl_add_u32 {P(t3)}, {P(t2)}, 5, {P(t3)}\nv_add_u32 {P(vTr)}, s{sA}, {P(t3)}')
        a(f'v_lshlrev_b32 {P(t3)}, 11, {P(t0)}\nv_lshl_add_u32 {P(t3)}, {P(t1)}, 9, {P(t3)}')
        a(f'v_lshl_add_u32 {P(t4)}, {P(t2)}, 5, {P(t3)}\nv_add_u32 {P(vTr2)}, s{sA}, {P(t4)}')
        a(f's_lshr_b32 s{sB}, {W}, 1\ns_lshl_b32 s{sB}, s{sB}, 3\nv_lshl_add_u32 {P(t4)}, {P(t2)}, 4, {P(t3)}\nv_add_u32 {P(vTr13)}, s{sB}, {P(t4)}')
        a(f's_lshl_b32 s{sA}, {G}, 11\nv_lshlrev_b32 {P(t3)}, 5, {P(vl)}\nv_add_u32 {P(vAG)}, s{sA}, {P(t3)}')
        a(f's_lshl_b32 s{sB}, {J}, 6\ns_add_u32 s{sB}, s{sB}, s{sA}\ns_lshl_b32 s{sC}, {W}, 4\ns_add_u32 s{sC}, s{sC}, s{sB}\nv_mov_b32 {P(vPub)}, s{sC}')
        a(f's_add_u32 s{sC}, s{sA}, {WS_H}\nv_lshlrev_b32 {P(t3)}, 4, {P(vl)}\nv_add_u32 {P(vHa)}, s{sC}, {P(t3)}')
        a(f's_lshl_b32 s{sD}, {J}, 5\ns_add_u32 s{sC}, s{sC}, s{sD}\ns_lshl_b32 s{sD}, {W}, 3\ns_add_u32 s{sC}, s{sC}, s{sD}\nv_mov_b32 {P(vHp)}, s{sC}')
        a(f's_lshl_b32 s{sC}, {J}, 3\ns_add_u32 s{sC}, s{sC}, {G}\ns_lshr_b32 s{sD}, s{sC}, 6\ns_lshl_b32 s{sD}, s{sD}, 14\ns_and_b32 s{sC}, s{sC}, 63\ns_lshl_b32 s{sC}, s{sC}, 7\ns_add_u32 s{sC}, s{sC}, s{sD}')
        a(f's_lshl_b32 s{sD}, {W}, 4\ns_add_u32 s{sC}, s{sC}, s{sD}\ns_add_u32 s{sC}, s{sC}, {WS_Y}\nv_mov_b32 {P(vYa)}, s{sC}')
        a(f's_add_u32 s{sD}, s{sD}, {L_YZ}\nv_mov_b32 {P(vYL)}, s{sD}')
        a(f'v_mul_u32_u24 {P(t3)}, 320, {P(t0)}\nv_and_b32 {P(t4)}, 15, {P(vl)}\nv_lshl_add_u32 {P(t3)}, {P(t4)}, 4, {P(t3)}\nv_add_u32 {P(vQw)}, {L_Q}, {P(t3)}')
        a(f'v_lshlrev_b32 {P(t3)}, 6, {P(t0)}\nv_lshl_add_u32 {P(t3)}, {P(t1)}, 4, {P(t3)}\nv_add_u32 {P(vPr)}, {L_P}, {P(t3)}')
        a(f'v_lshlrev_b32 {P(t3)}, 4, {P(t1)}\nv_add_u32 {P(vMr)}, {L_M}, {P(t3)}')
        a(f's_add_u32 s{sC}, s{sA}, {WS_ML}\nv_lshlrev_b32 {P(t4)}, 4, {P(vl)}\nv_add_u32 {P(vMLa)}, s{sC}, {P(t4)}')
        a(f's_add_u32 s{sC}, s{sB}, {WS_ML}\nv_add_u32 {P(vMLp)}, s{sC}, {P(t3)}')
        a(f's_lshl_b32 s{sC}, {G}, 16\ns_lshl_b32 s{sD}, {J}, 11\ns_add_u32 s{sC}, s{sC}, s{sD}\ns_add_u32 s{sC}, s{sC}, {WS_OP}\nv_add_u32 {P(vOPa)}, s{sC}, {P(t4)}')
        a(f's_add_u32 s{sC}, s{sB}, {WS_O}\nv_lshlrev_b32 {P(t3)}, 4, {P(t0)}\nv_add_u32 {P(vOp)}, s{sC}, {P(t3)}')
        a(f'v_mov_b32 {P(vZ)}, 0\nv_mov_b32 {P(vOne)}, 0x3f803f80')
        for i in range(4): a(f'v_mov_b32 {P(ONE4+i)}, {P(vOne)}')
        a(f's_mov_b32 s{sHi}, 0xffff0000\ns_mov_b32 s{sPerm}, 0x07060302\ns_mov_b32 s{sF00}, 0xffffff00')
        a('s_waitcnt lgkmcnt(0)')
        a(f's_add_u32 s{sT}, s{sE}, 1\nv_mov_b32 {P(vT32)}, s{sT}\nv_and_b32 {P(vT16)}, 0xffff, {P(vT32)}\nv_and_b32 {P(vT8)}, 0xff, {P(vT32)}')
        self.stamp('D', 'E', once=True, pro=True)
        a('s_barrier')
        self.stamp('D', 'B1', once=True, pro=True)
        a(f's_getreg_b32 s{sD}, hwreg(HW_REG_XCC_ID, 0, 4)\ns_lshl_b32 s{sD}, s{sD}, 12\nv_xor_b32 {P(vT16x)}, s{sD}, {P(vT16)}')
        a(f'v_mov_b32 {P(vOneI)}, 1\nv_mov_b32 {P(vP4)}, 0\ns_lshl_b32 s{sA}, {W}, 2\nv_mov_b32 {P(vFl)}, s{sA}')
        self.wait_flag(vZ, MS_WQ, 1, R, 1, sleep=1)
        a('s_waitcnt vmcnt(0)')
        self.stamp('D', 'xland', once=True, pro=True)
        for p in range(2):
            for i in range(4):
                a(f'ds_read_b64_tr_b16 {P(WQ+2*(4*p+i),2)}, {P(vTr)} offset:{L_WQ + 256*i + 128*p}')
        a('s_waitcnt lgkmcnt(0)')
        self.colsum(WQ, csq, ACC, vOne, t0)
        a.label('L_D_loop')
        self.ln_gemv(XP, WQ, csq, ACC, y, s1, s2, vOne, t0, t1, t2, t3)
        a(f'v_cvt_pk_bf16_f32 {P(t0)}, {P(y)}, {P(y)}')
        lq1 = self.lab('q1'); lq2 = self.lab('q2')
        a(f'v_add_u32 {P(t1)}, {WS_Q}, {P(vPub)}')
        a(f's_cmp_lg_u32 s{sPass}, 0\ns_cbranch_scc1 {lq1}')
        a(f'v_and_or_b32 {P(Gr)}, {P(t0)}, s{sHi}, {P(vT16x)}')
        self.quad_gather(Gr)
        a(f's_mov_b64 exec, 1\nglobal_store_dwordx4 {P(t1)}, {P(Gr,4)}, {S2(sWS)}\ns_mov_b64 exec, -1')
        a(f'v_and_or_b32 {P(Ga)}, {P(t0)}, s{sHi}, {P(vT16)}')
        self.quad_gather(Ga)
        a(f'v_add_u32 {P(t1)}, {WS_QB}, {P(vPub)}\ns_mov_b64 exec, 1\nglobal_store_dwordx4 {P(t1)}, {P(Ga,4)}, {S2(sWS)} sc1\ns_mov_b64 exec, -1')
        a(f's_branch {lq2}')
        a.label(lq1, keep=False)
        a(f'v_and_or_b32 {P(Gr)}, {P(t0)}, s{sHi}, {P(vT16)}')
        self.quad_gather(Gr)
        a('s_mov_b64 exec, 1')
        self.publish(f'global_store_dwordx4 {P(t1)}, {P(Gr,4)}, {S2(sWS)}')
        a('s_mov_b64 exec, -1')
        a.label(lq2)
        self.stamp('D', 'qpub')
        self.stamp('D', 'qpub', pro=True)
        lx = self.lab('pt')
        a(f's_cmp_lg_u32 s{sPass}, 0\ns_cbranch_scc1 {lx}')
        l3 = self.lab('pt3')
        a(f's_cmp_lg_u32 {W}, 2\ns_cbranch_scc1 {l3}')
        a(f's_lshl_b32 s{sC}, {G}, 16\ns_lshl_b32 s{sD}, {J}, 11\ns_add_u32 s{sC}, s{sC}, s{sD}\ns_add_u32 s{sC}, s{sC}, {WS_OP}\nv_lshlrev_b32 {P(t0)}, 7, {P(vl)}\nv_add_u32 {P(t0)}, s{sC}, {P(t0)}')
        a(f's_mov_b64 exec, 0xffff\nglobal_load_dword {P(vDum)}, {P(t0)}, {S2(sWS)} sc1\ns_mov_b64 exec, -1')
        a.label(l3)
        a(f's_cmp_lg_u32 {W}, 3\ns_cbranch_scc1 {lx}')
        a(f'v_and_b32 {P(t0)}, 7, {P(vl)}\ns_lshl_b32 s{sC}, {J}, 3\nv_add_u32 {P(t0)}, s{sC}, {P(t0)}\nv_lshrrev_b32 {P(t1)}, 6, {P(t0)}\nv_lshlrev_b32 {P(t1)}, 14, {P(t1)}\nv_and_b32 {P(t0)}, 63, {P(t0)}\nv_lshl_add_u32 {P(t0)}, {P(t0)}, 7, {P(t1)}')
        a(f'v_lshrrev_b32 {P(t1)}, 3, {P(vl)}\nv_and_b32 {P(t1)}, 1, {P(t1)}\nv_lshl_add_u32 {P(t0)}, {P(t1)}, 13, {P(t0)}\nv_lshrrev_b32 {P(t1)}, 4, {P(vl)}\nv_lshl_add_u32 {P(t0)}, {P(t1)}, 16, {P(t0)}\nv_add_u32 {P(t0)}, {WS_Y}, {P(t0)}')
        a(f'global_load_dword {P(vDum)}, {P(t0)}, {S2(sWS)} sc1')
        a.label(lx)
        lx = self.lab('qg')
        a(f's_cmp_lg_u32 {W}, 0\ns_cbranch_scc1 {lx}')
        a(f'v_add_u32 {P(t4)}, {WS_Q}, {P(vAG)}')
        lg1 = self.lab('qg1'); lg2 = self.lab('qg2'); lgB = self.lab('qgB')
        a(f's_cmp_lg_u32 s{sPass}, 0\ns_cbranch_scc1 {lg1}')
        if self.force_slow:
            a(f's_branch {lgB}')
        self.gather16(R, t4, vT16x, 2, 'qA', limit=NA_POLL, onfail=lgB)
        a(f's_mov_b32 s{sMode}, 0\ns_branch L_qmode')
        a.label(lgB, keep=False)
        a(f'v_add_u32 {P(t4)}, {WS_QB}, {P(vAG)}')
        self.gather16(R, t4, vT16, 2, 'qB')
        a(f's_mov_b32 s{sMode}, 1')
        a.label('L_qmode')
        a(f'v_mov_b32 {P(t0)}, s{sMode}\nds_write_b32 {P(vZ)}, {P(t0)} offset:{F_MODE}\ns_branch {lg2}')
        a.label(lg1, keep=False)
        self.gather16(R, t4, vT16, 2, 'q')
        a.label(lg2)
        self.pack8(Gr, R)
        a(f'ds_write_b128 {P(vQw)}, {P(Gr,4)}')
        lw = self.lab('qx1')
        a(f's_cmp_lg_u32 s{sPass}, 0\ns_cbranch_scc1 {lw}')
        self.set_flag(vZ, F_X0, vOneI)
        a.label(lw)
        a('s_waitcnt lgkmcnt(0)')
        a.label(lx)
        lb1 = self.lab('b1'); ld123 = self.lab('d123'); lo = self.lab('dO'); ls3 = self.lab('s3')
        a(f's_cmp_eq_u32 s{sPass}, 0\ns_cbranch_scc1 {lb1}')
        a('s_barrier\ns_barrier')
        a(f's_cmp_lg_u32 {W}, 0\ns_cbranch_scc1 {lo}\ns_branch {ls3}')
        a.label(lb1, keep=False)
        a(f's_cmp_lg_u32 {W}, 0\ns_cbranch_scc1 {ld123}')
        self.wait_flag(vZ, F_PF, 4, R, 14, sleep=1)
        a.label(ls3)
        for gq in range(4): a(f'ds_read_b128 {P(Pa+4*gq,4)}, {P(vPr)} offset:{256*gq}')
        a(f'ds_read_b128 {P(M4,4)}, {P(vMr)}\ns_waitcnt lgkmcnt(0)')
        for gq in range(4):
            a(f'v_mfma_f32_16x16x32_bf16 {P(LL+4*gq,4)}, {P(ONE4,4)}, {P(Pa+4*gq,4)}, 0')
        a(f'v_max3_f32 {P(t0)}, {P(M4)}, {P(M4+1)}, {P(M4+2)}\nv_max_f32 {P(Gr)}, {P(t0)}, {P(M4+3)}')
        for i in range(4): a(f'v_sub_f32 {P(M4+i)}, {P(M4+i)}, {P(Gr)}')
        for i in range(4): a(f'v_exp_f32 {P(M4+i)}, {P(M4+i)}')
        a(f'v_mul_f32 {P(Gr+1)}, {P(M4)}, {P(LL)}')
        for i in range(1, 4): a(f'v_fmac_f32 {P(Gr+1)}, {P(M4+i)}, {P(LL+4*i)}')
        a(f'v_mov_b32 {P(Gr+2)}, {P(vT32)}\nv_mov_b32 {P(Gr+3)}, {P(vT32)}\ns_mov_b64 exec, 15')
        self.publish(f'global_store_dwordx4 {P(vMLp)}, {P(Gr,4)}, {S2(sWS)}')
        a('s_mov_b64 exec, -1')
        lp = self.lab('ml'); ok = self.lab('ok')
        self.spin_init()
        a.label(lp)
        a(f'global_load_dwordx4 {P(Ga,4)}, {P(vMLa)}, {S2(sWS)} sc1\nglobal_load_dwordx4 {P(Gb,4)}, {P(vMLa)}, {S2(sWS)} offset:1024 sc1\ns_waitcnt vmcnt(0)')
        a(f'v_bitop3_b32 {P(t0)}, {P(Ga+2)}, {P(Gb+2)}, {P(vT32)} bitop3:0x7e\nv_cmp_ne_u32 vcc, 0, {P(t0)}\ns_cbranch_vccz {ok}')
        self.spin_tail(lp, 3)
        a.label(ok)
        self.stamp('D', 'mlgot')
        a(f'v_max_f32 {P(t0)}, {P(Ga)}, {P(Gb)}')
        for i in self.allred('v_max_f32', t0, t1): a(i)
        a(f'v_sub_f32 {P(wa)}, {P(Ga)}, {P(t0)}\nv_sub_f32 {P(wb)}, {P(Gb)}, {P(t0)}\nv_exp_f32 {P(wa)}, {P(wa)}\nv_exp_f32 {P(wb)}, {P(wb)}')
        a(f'v_mul_f32 {P(t0)}, {P(wa)}, {P(Ga+1)}\nv_fmac_f32 {P(t0)}, {P(wb)}, {P(Gb+1)}')
        for i in self.allred('v_add_f32', t0, t1): a(i)
        a(f'v_rcp_f32 {P(t0)}, {P(t0)}\nv_mul_f32 {P(wa)}, {P(wa)}, {P(t0)}\nv_mul_f32 {P(wb)}, {P(wb)}, {P(t0)}')
        lp = self.lab('op'); ok = self.lab('ok')
        self.spin_init()
        a.label(lp)
        a(f'global_load_dwordx4 {P(Ra,4)}, {P(vOPa)}, {S2(sWS)} sc1\nglobal_load_dwordx4 {P(Rb,4)}, {P(vOPa)}, {S2(sWS)} offset:1024 sc1\ns_waitcnt vmcnt(0)')
        for i in range(8): a(f'v_xor_b32 {P(Ra+i)}, {P(Ra+i)}, {P(vT8)}')
        a(f'v_or3_b32 {P(t0)}, {P(Ra)}, {P(Ra+1)}, {P(Ra+2)}\nv_or3_b32 {P(t1)}, {P(Ra+3)}, {P(Rb)}, {P(Rb+1)}\nv_or3_b32 {P(t0)}, {P(t0)}, {P(Rb+2)}, {P(Rb+3)}\nv_or_b32 {P(t0)}, {P(t0)}, {P(t1)}\nv_and_b32 {P(t0)}, 0xff, {P(t0)}\nv_cmp_ne_u32 vcc, 0, {P(t0)}')
        a(f's_cbranch_vccz {ok}')
        self.spin_tail(lp, 4)
        a.label(ok)
        self.stamp('D', 'opgot')
        for i in range(4): a(f'v_mul_f32 {P(Ra+i)}, {P(wa)}, {P(Ra+i)}')
        for i in range(4): a(f'v_fmac_f32 {P(Ra+i)}, {P(wb)}, {P(Rb+i)}')
        for s in (4, 8):
            for i in range(4): a(f'v_add_f32_dpp {P(Ra+i)}, {P(Ra+i)}, {P(Ra+i)} row_ror:{s} row_mask:0xf bank_mask:0xf')
        a(f'v_permlane16_swap_b32 {P(Ra)}, {P(Ra+1)}\nv_permlane16_swap_b32 {P(Ra+2)}, {P(Ra+3)}')
        a(f'v_add_f32 {P(Ra)}, {P(Ra)}, {P(Ra+1)}\nv_add_f32 {P(Ra+2)}, {P(Ra+2)}, {P(Ra+3)}')
        a(f'v_permlane32_swap_b32 {P(Ra)}, {P(Ra+2)}\nv_add_f32 {P(Ra)}, {P(Ra)}, {P(Ra+2)}')
        a(f'v_cvt_pk_bf16_f32 {P(t0)}, {P(Ra)}, {P(Ra)}\nv_and_or_b32 {P(Gr)}, {P(t0)}, s{sHi}, {P(vT16)}')
        self.quad_gather(Gr)
        a(f's_mov_b32 exec_lo, 0x00010001\ns_mov_b32 exec_hi, 0x00010001')
        self.publish(f'global_store_dwordx4 {P(vOp)}, {P(Gr,4)}, {S2(sWS)}')
        a('s_mov_b64 exec, -1')
        self.set_flag(vP4, F_O, vOneI)
        self.stamp('D', 'opub')
        a(f's_branch {lo}')
        a.label(ld123, keep=False)
        self.wait_flag(vZ, F_X0, 1, R, 15, sleep=4)
        a(f'ds_read_b32 {P(t0)}, {P(vZ)} offset:{F_MODE}\ns_waitcnt lgkmcnt(0)\nv_readfirstlane_b32 s{sMode}, {P(t0)}')
        a.label(lo)
        lx = self.lab('wo')
        a(f's_cmp_lg_u32 s{sPass}, 0\ns_cbranch_scc1 {lx}')
        self.wait_flag(vZ, MS_WO, 1, R, 5)
        for p in range(2):
            for i in range(4):
                a(f'ds_read_b64_tr_b16 {P(WO+2*(4*p+i),2)}, {P(vTr)} offset:{L_WO + 256*i + 128*p}')
        a('s_waitcnt lgkmcnt(0)')
        a.label(lx)
        self.wait_flag(vP4, F_O, 1, R, 6)
        a(f'v_add_u32 {P(t4)}, {WS_O}, {P(vAG)}')
        self.gather16(R, t4, vT16, 7, 'o')
        self.pack8(XP, R)
        self.gemv8(XP, WO, ACC, y, t0)
        a(f'v_and_or_b32 {P(Gr)}, {P(y)}, s{sF00}, {P(vT8)}')
        self.quad_gather(Gr)
        self.cross_publish(Gr, vYa, 0, vYL, 0, t1, vFl, F_Y, vOneI)
        self.stamp('D', 'ypub')
        lx = self.lab('w13')
        a(f's_cmp_lg_u32 s{sPass}, 0\ns_cbranch_scc1 {lx}')
        self.wait_flag(vZ, MS_W13, 2, R, 8)
        lodd = self.lab('odd'); ljn = self.lab('jn')
        a(f's_mov_b32 vcc_lo, 0x33333333\ns_mov_b32 vcc_hi, 0x33333333')
        a(f's_bitcmp1_b32 {W}, 0\ns_cbranch_scc1 {lodd}')
        for par in range(2):
            if par == 1: a.label(lodd, keep=False)
            qp = '[0,1,0,1]' if par == 0 else '[2,3,2,3]'
            for p in range(2):
                for i in range(4):
                    off = 128*i + 64*p
                    a(f'ds_read_b64_tr_b16 {P(R,2)}, {P(vTr13)} offset:{L_W1 + off}\nds_read_b64_tr_b16 {P(R+2,2)}, {P(vTr13)} offset:{L_W3 + off}\ns_waitcnt lgkmcnt(0)')
                    for h in range(2):
                        d = W13 + 2*(4*p+i) + h
                        a(f'v_mov_b32_dpp {P(R+4+h)}, {P(R+h)} quad_perm:{qp} row_mask:0xf bank_mask:0xf')
                    for h in range(2):
                        d = W13 + 2*(4*p+i) + h
                        a(f'v_cndmask_b32_dpp {P(d)}, {P(R+2+h)}, {P(R+4+h)}, vcc quad_perm:{qp} row_mask:0xf bank_mask:0xf')
            if par == 0: a(f's_branch {ljn}')
        a.label(ljn)
        for i in range(4):
            a(f'ds_read_b64_tr_b16 {P(W2+2*i,2)}, {P(vTr2)} offset:{L_W2 + 128*i}')
        a('s_waitcnt lgkmcnt(0)')
        self.colsum(W13, cs13, ACC, vOne, t0)
        a.label(lx)
        self.wait_flag(vP4, F_X1, 1, R, 9)
        a(f'v_add_u32 {P(t4)}, {WS_X1}, {P(vAG)}')
        self.gather16(R, t4, vT16, 10, 'x1')
        self.stamp('D', 'x1got')
        self.pack8(XP, R)
        lx = self.lab('noffn')
        a(f's_cmp_ge_u32 {J}, 28\ns_cbranch_scc1 {lx}')
        self.ln_gemv(XP, W13, cs13, ACC, y, s1, s2, vOne, t0, t1, t2, t3)
        a(f'v_cvt_pk_bf16_f32 {P(t0)}, {P(y)}, {P(y)}\nv_and_b32 {P(t0)}, s{sHi}, {P(t0)}')
        a(f'v_mul_f32 {P(t1)}, 0xbfb8aa3b, {P(t0)}\nv_exp_f32 {P(t1)}, {P(t1)}\nv_add_f32 {P(t1)}, 1.0, {P(t1)}\nv_rcp_f32 {P(t1)}, {P(t1)}\nv_mul_f32 {P(t1)}, {P(t0)}, {P(t1)}')
        a(f'v_cvt_pk_bf16_f32 {P(t1)}, {P(t1)}, {P(t1)}\nv_and_b32 {P(t1)}, s{sHi}, {P(t1)}')
        a(f'v_mul_f32_dpp {P(t1)}, {P(t0)}, {P(t1)} quad_perm:[2,3,2,3] row_mask:0xf bank_mask:0xf')
        a(f'v_cvt_pk_bf16_f32 {P(t1)}, {P(t1)}, {P(t1)}\nv_and_or_b32 {P(Gr)}, {P(t1)}, s{sHi}, {P(vT16)}')
        a(f'v_mov_b32_dpp {P(Gr+1)}, {P(Gr)} quad_perm:[1,1,1,1] row_mask:0xf bank_mask:0xf')
        a('s_mov_b64 exec, 1')
        self.publish(f'global_store_dwordx2 {P(vHp)}, {P(Gr,2)}, {S2(sWS)}')
        a('s_mov_b64 exec, -1')
        a.label(lx)
        lp = self.lab('h'); ok = self.lab('ok')
        a(f's_mov_b32 exec_lo, -1\ns_mov_b32 exec_hi, 0x00ffffff')
        self.spin_init()
        a.label(lp)
        a(f'global_load_dwordx4 {P(R,4)}, {P(vHa)}, {S2(sWS)} sc1\ns_waitcnt vmcnt(0)')
        a(f'v_bitop3_b32 {P(t0)}, {P(R)}, {P(R+1)}, {P(vT16)} bitop3:0x7e\nv_bitop3_b32 {P(t1)}, {P(R+2)}, {P(R+3)}, {P(vT16)} bitop3:0x7e\nv_or_b32 {P(t0)}, {P(t0)}, {P(t1)}\nv_cmp_ne_u16 vcc, 0, {P(t0)}')
        a(f's_cbranch_vccz {ok}')
        self.spin_tail(lp, 11)
        a.label(ok)
        self.stamp('D', 'hgot')
        a(f's_mov_b64 exec, -1\nv_mov_b32 {P(XP)}, 0\nv_mov_b32 {P(XP+1)}, 0\ns_mov_b32 exec_hi, 0x00ffffff')
        a(f'v_perm_b32 {P(XP)}, {P(R+1)}, {P(R)}, s{sPerm}\nv_perm_b32 {P(XP+1)}, {P(R+3)}, {P(R+2)}, s{sPerm}\ns_mov_b64 exec, -1')
        for i in range(4):
            a(f'v_mfma_f32_4x4x4_16b_bf16 {P(ACC+4*i,4)}, {P(XP,2)}, {P(W2+2*i,2)}, 0')
        a(f'v_add_f32 {P(y)}, {P(ACC)}, {P(ACC+5)}\nv_add_f32 {P(t0)}, {P(ACC+10)}, {P(ACC+15)}\nv_add_f32 {P(y)}, {P(y)}, {P(t0)}')
        for i in self.allred('v_add_f32', y, t0): a(i)
        a(f'v_and_or_b32 {P(Gr)}, {P(y)}, s{sF00}, {P(vT8)}')
        self.quad_gather(Gr)
        self.cross_publish(Gr, vYa, 0x10000, vYL, 64, t1, vFl, F_Z, vOneI)
        self.stamp('D', 'zpub')
        if self.onepass: a('s_branch L_D_end')
        a(f's_cmp_lg_u32 s{sPass}, 0\ns_cbranch_scc1 L_D_end')
        self.wait_flag(vZ, F_X2, 1, R, 12)
        a(f'v_add_u32 {P(t4)}, {WS_X2}, {P(vAG)}')
        self.gather16(R, t4, vT16, 13, 'x2')
        self.pack8(XP, R)
        a(f's_mov_b32 s{sPass}, 1\ns_add_u32 s{sT}, s{sT}, 1\nv_mov_b32 {P(vT32)}, s{sT}\nv_and_b32 {P(vT16)}, 0xffff, {P(vT32)}\nv_and_b32 {P(vT8)}, 0xff, {P(vT32)}')
        a(f'v_add_u32 {P(vYa)}, 0x20000, {P(vYa)}\nv_add_u32 {P(vYL)}, 128, {P(vYL)}\nv_mov_b32 {P(vP4)}, 4\nv_add_u32 {P(vFl)}, 32, {P(vFl)}')
        a('s_branch L_D_loop')
        a.label('L_D_end', keep=False)
        self.dump_stamps()
        a('s_endpgm')

    def quad_gather(self, Gr):
        for i in range(1, 4):
            self.a(f'v_mov_b32_dpp {P(Gr+i)}, {P(Gr)} quad_perm:[{i},{i},{i},{i}] row_mask:0xf bank_mask:0xf')
    def cross_publish(self, Gr, vYa, goff, vYL, loff, t, vFl, fl, vOneI):
        a = self.a
        a(f'v_add_u32 {P(t)}, {goff}, {P(vYa)}\nv_add_u32 {P(t+1)}, {goff + 8192}, {P(vYa)}\ns_mov_b64 exec, 1')
        a(f'global_store_dwordx4 {P(t)}, {P(Gr,4)}, {S2(sWS)} sc1\nglobal_store_dwordx4 {P(t+1)}, {P(Gr,4)}, {S2(sWS)} sc1')
        a(f'ds_write_b128 {P(vYL)}, {P(Gr,4)} offset:{loff}\nds_write_b32 {P(vFl)}, {P(vOneI)} offset:{fl}\ns_mov_b64 exec, -1')
    def mfma8(self, XP, Wt, ACC):
        L = []
        for p in range(2):
            for i in range(4):
                c = '0' if p == 0 else P(ACC+4*i, 4)
                L.append(f'v_mfma_f32_4x4x4_16b_bf16 {P(ACC+4*i,4)}, {P(XP+2*p,2)}, {P(Wt+2*(4*p+i),2)}, {c}')
        return L
    def gemv8(self, XP, Wt, ACC, y, t):
        a = self.a
        for m in self.mfma8(XP, Wt, ACC): a(m)
        a(f'v_add_f32 {P(y)}, {P(ACC)}, {P(ACC+5)}\nv_add_f32 {P(t)}, {P(ACC+10)}, {P(ACC+15)}\nv_add_f32 {P(y)}, {P(y)}, {P(t)}')
        for i in self.allred('v_add_f32', y, t): a(i)
    def colsum(self, Wt, cs, ACC, vOne, t):
        a = self.a
        a(f'v_mov_b32 {P(ACC+8)}, {P(vOne)}\nv_mov_b32 {P(ACC+9)}, {P(vOne)}')
        for k in range(8):
            c = '0' if k < 2 else P(ACC + 4*(k & 1), 4)
            a(f'v_mfma_f32_4x4x4_16b_bf16 {P(ACC+4*(k&1),4)}, {P(ACC+8,2)}, {P(Wt+2*k,2)}, {c}')
        a(f'v_add_f32 {P(cs)}, {P(ACC)}, {P(ACC+4)}')
        for i in self.allred('v_add_f32', cs, t): a(i)
    def ln_gemv(self, XP, Wt, cs, ACC, y, s1, s2, vOne, t0, t1, t2, t3):
        a = self.a
        dots = []
        for i in range(4):
            dots.append(f'v_dot2_f32_bf16 {P(s1)}, {P(XP+i)}, {P(vOne)}, ' + ('0' if i == 0 else P(s1)))
            dots.append(f'v_dot2_f32_bf16 {P(s2)}, {P(XP+i)}, {P(XP+i)}, ' + ('0' if i == 0 else P(s2)))
        self.interleave(self.mfma8(XP, Wt, ACC), dots)
        main = [f'v_add_f32 {P(y)}, {P(ACC)}, {P(ACC+5)}', f'v_add_f32 {P(t0)}, {P(ACC+10)}, {P(ACC+15)}', f'v_add_f32 {P(y)}, {P(y)}, {P(t0)}'] + self.allred('v_add_f32', y, t0)
        st = [f'v_permlane32_swap_b32 {P(s1)}, {P(s2)}', f'v_add_f32 {P(s1)}, {P(s1)}, {P(s2)}']
        st += [f'v_add_f32_dpp {P(s1)}, {P(s1)}, {P(s1)} row_ror:{s} row_mask:0xf bank_mask:0xf' for s in (1, 2, 4, 8)]
        st += [f'v_mov_b32 {P(t1)}, {P(s1)}', f'v_permlane16_swap_b32 {P(s1)}, {P(t1)}', f'v_add_f32 {P(s1)}, {P(s1)}, {P(t1)}']
        st += [f'v_mov_b32 {P(s2)}, {P(s1)}', f'v_permlane32_swap_b32 {P(s1)}, {P(s2)}']
        st += [f'v_mul_f32 {P(s1)}, 0x3b000000, {P(s1)}', f'v_mul_f32 {P(s2)}, 0x3b000000, {P(s2)}',
               f'v_fma_f32 {P(s2)}, -{P(s1)}, {P(s1)}, {P(s2)}', f'v_add_f32 {P(s2)}, 0x3727c5ac, {P(s2)}', f'v_rsq_f32 {P(s2)}, {P(s2)}']
        self.interleave(st, main)
        a(f'v_fma_f32 {P(y)}, -{P(s1)}, {P(cs)}, {P(y)}\nv_mul_f32 {P(y)}, {P(y)}, {P(s2)}')

HEADER = open(os.path.join(os.path.dirname(os.path.abspath(__file__)), 'header.txt')).read()
FOOTER = f'''.section .rodata,"a"
.p2align 6
.amdhsa_kernel {KN}
  .amdhsa_next_free_vgpr 168
  .amdhsa_next_free_sgpr 102
  .amdhsa_accum_offset 168
  .amdhsa_group_segment_fixed_size 0
  .amdhsa_kernarg_size 96
  .amdhsa_user_sgpr_count 2
  .amdhsa_user_sgpr_kernarg_segment_ptr 1
  .amdhsa_system_sgpr_workgroup_id_x 1
.end_amdhsa_kernel
'''
def generate(**kw):
    g = Gen(**kw)
    body = g.build()
    txt = HEADER + f'; @launch grid=(256,1,1) block=({64*NWAVES},1,1) lds={LDS_BYTES}\n' + body + FOOTER
    return txt, g

if __name__ == '__main__':
    import argparse
    ap = argparse.ArgumentParser()
    ap.add_argument('-o', default='cdna_kernels/' + NAME + '.s')
    ap.add_argument('--stamps', default=False); ap.add_argument('--slow', action='store_true')
    ap.add_argument('--onepass', action='store_true'); ap.add_argument('--dbgtime', action='store_true'); ap.add_argument('--plan', default='seq'); ap.add_argument('--depth', type=int, default=16); ap.add_argument('--depth2', type=int, default=8); ap.add_argument('--ntkv', action='store_true'); ap.add_argument('--ntw', action='store_true')
    args = ap.parse_args()
    txt, g = generate(stamps=args.stamps, force_slow=args.slow, nt_kv=args.ntkv, nt_w=args.ntw, onepass=args.onepass, depth=args.depth, depth2=args.depth2, plan=args.plan, dbgtime=args.dbgtime)
    open(args.o, 'w').write(txt)
    print('instructions', g.a.count, 'nops', g.a.nops, 'stamps', g.nstamp)
```

```python
import re

_RV = re.compile(r'^-?(?:abs\()?v\[(\d+):(\d+)\]\)?$|^-?(?:abs\()?v(\d+)\)?$')
_RS = re.compile(r'^s\[(\d+):(\d+)\]$|^s(\d+)$')

def vregs(op):
    m = _RV.match(op)
    if not m: return set()
    if m.group(1) is not None: return set(range(int(m.group(1)), int(m.group(2)) + 1))
    return {int(m.group(3))}

def sregs(op):
    if op == 'vcc': return {'vcc'}
    if op == 'exec': return {'exec'}
    if op == 'm0': return {'m0'}
    m = _RS.match(op)
    if not m: return set()
    if m.group(1) is not None: return set(range(int(m.group(1)), int(m.group(2)) + 1))
    return {int(m.group(3))}

TRANS = ('v_exp_f32', 'v_log_f32', 'v_rcp_f32', 'v_rsq_f32', 'v_sqrt_f32', 'v_sin_f32', 'v_cos_f32', 'v_rcp_iflag_f32')
MFMA_PASSES = {'v_mfma_f32_4x4x4_16b_bf16': 2, 'v_mfma_f32_16x16x32_bf16': 4, 'v_mfma_f32_16x16x16_bf16': 4,
               'v_mfma_f32_32x32x16_bf16': 8}

class Ins:
    __slots__ = ('text', 'mn', 'ops', 'kind', 'vw', 'vr', 'sw', 'sr', 'dpp', 'passes', 'srcc', 'srcab', 'states', 'stdata', 'ldsdma', 'dppsrc')
    def __init__(self, text):
        self.text = text
        t = text.split(';')[0].strip()
        parts = t.split(None, 1)
        self.mn = parts[0]
        rest = parts[1] if len(parts) > 1 else ''
        ops = []; cur = ''; depth = 0
        for ch in rest:
            if ch == '[': depth += 1
            if ch == ']': depth -= 1
            if ch == ',' and depth == 0:
                ops.append(cur.strip()); cur = ''
            else: cur += ch
        if cur.strip(): ops.append(cur.strip())
        mods = ''
        if ops:
            last = ops[-1].split(None, 1)
            ops[-1] = last[0]
            if len(last) > 1: mods = last[1]
        self.ops = ops
        self.vw = set(); self.vr = set(); self.sw = set(); self.sr = set()
        self.dpp = ('quad_perm' in mods or 'row_' in mods); self.passes = 0
        self.srcc = set(); self.srcab = set(); self.states = 1; self.stdata = set(); self.ldsdma = False
        self.dppsrc = set()
        mn = self.mn
        if mn == 's_nop':
            self.kind = 'nop'; self.states = int(ops[0], 0) + 1
        elif mn.startswith('v_mfma'):
            self.kind = 'mfma'; self.passes = MFMA_PASSES[mn]
            self.vw = vregs(ops[0]); self.srcab = vregs(ops[1]) | vregs(ops[2]); self.srcc = vregs(ops[3])
            self.vr = self.srcab | self.srcc
        elif mn.startswith('v_'):
            self.kind = 'valu'
            base = mn.replace('_dpp', '').replace('_e32', '').replace('_e64', '').replace('_sdwa', '')
            if base.startswith('v_cmp'):
                self.sw = sregs(ops[0])
                for o in ops[1:]: self.vr |= vregs(o); self.sr |= sregs(o)
            elif base in ('v_readfirstlane_b32', 'v_readlane_b32'):
                self.sw = sregs(ops[0]); self.vr = vregs(ops[1])
                for o in ops[2:]: self.sr |= sregs(o)
            elif base.startswith('v_permlane') and 'swap' in base:
                self.vw = vregs(ops[0]) | vregs(ops[1]); self.vr = set(self.vw)
            else:
                self.vw = vregs(ops[0])
                k = 1
                if base in ('v_add_co_u32', 'v_sub_co_u32', 'v_addc_co_u32'):
                    self.sw = sregs(ops[1]); k = 2
                for o in ops[k:]: self.vr |= vregs(o); self.sr |= sregs(o)
                if base in ('v_fmac_f32', 'v_dot2c_f32_bf16', 'v_pk_fmac_f16'): self.vr |= self.vw
                if base == 'v_cndmask_b32' and not self.sr: self.sr.add('vcc')
                if self.dpp:
                    self.dppsrc = vregs(ops[1])
                    self.vr |= self.vw
            if base in TRANS: self.kind = 'trans'
            if base.startswith('v_dot2'): self.kind = 'dot'
            self.mn = base
        elif mn.startswith('ds_'):
            self.kind = 'ds'
            if mn.startswith('ds_read'):
                self.vw = vregs(ops[0]); self.vr = vregs(ops[1])
            else:
                for o in ops: self.vr |= vregs(o)
        elif mn.startswith('global_') or mn.startswith('buffer_'):
            self.kind = 'vmem'
            if 'lds' in mods.split() or mn.startswith('global_load_lds'):
                self.ldsdma = True
                for o in ops: self.vr |= vregs(o); self.sr |= sregs(o)
            elif '_load_' in mn:
                self.vw = vregs(ops[0])
                for o in ops[1:]: self.vr |= vregs(o); self.sr |= sregs(o)
            else:
                for o in ops: self.vr |= vregs(o); self.sr |= sregs(o)
                if mn.endswith('x4') or mn.endswith('x3'):
                    self.stdata = vregs(ops[1]) if mn.startswith('global_') else vregs(ops[0])
        elif mn.startswith('s_'):
            self.kind = 'salu'
            nodst = mn.startswith(('s_cmp', 's_cbranch', 's_branch', 's_waitcnt', 's_barrier', 's_sleep', 's_endpgm', 's_setprio', 's_bitcmp'))
            if ops and not nodst:
                self.sw = sregs(ops[0])
                for o in ops[1:]: self.sr |= sregs(o)
            else:
                for o in ops: self.sr |= sregs(o)
        else:
            raise ValueError('unknown instruction: ' + text)

VALU_KINDS = ('valu', 'trans', 'dot')

def need(p, c):
    n = 0
    if p.kind in VALU_KINDS and p.vw:
        if c.kind in VALU_KINDS and c.dpp and (p.vw & c.dppsrc): n = max(n, 2)
        if c.mn.startswith('v_permlane') and (p.vw & c.vr): n = max(n, 2)
        if c.kind == 'mfma' and (p.vw & c.vr): n = max(n, 2)
        if c.mn in ('v_readfirstlane_b32', 'v_readlane_b32') and (p.vw & c.vr): n = max(n, 1)
    if p.kind == 'trans' and c.kind in ('valu', 'dot') and (p.vw & c.vr): n = max(n, 1)
    if p.kind == 'dot' and (p.vw & (c.vr | c.vw)):
        if c.kind == 'dot' and c.mn == p.mn:
            ab = set()
            for o in c.ops[1:3]: ab |= vregs(o)
            if p.vw & ab: n = max(n, 3)
        else: n = max(n, 3)
    if p.kind == 'mfma':
        tab = {2: 0, 4: 1, 8: 2}[p.passes]
        if c.kind == 'mfma':
            if p.vw & c.srcc:
                if p.vw == c.srcc and p.passes == c.passes: n = max(n, (2, 0, 0)[tab])
                else: n = max(n, (4, 6, 10)[tab])
            if p.vw & c.srcab: n = max(n, (5, 8, 12)[tab])
            if (p.vw & c.vw) and not (p.vw & c.srcc): n = max(n, (5, 8, 12)[tab])
        elif c.kind in VALU_KINDS:
            if p.vw & (c.vr | c.vw): n = max(n, (5, 8, 12)[tab])
            if p.srcc & c.vw: n = max(n, (1, 3, 7)[tab])
        elif c.kind in ('vmem', 'ds'):
            if p.vw & (c.vr | c.vw): n = max(n, (5, 8, 12)[tab])
    if p.kind in VALU_KINDS and p.sw:
        if c.kind in VALU_KINDS and (p.sw & c.sr):
            n = max(n, 4 if c.mn in ('v_readlane_b32', 'v_writelane_b32') else 2)
        if c.kind == 'vmem' and (p.sw & c.sr): n = max(n, 5)
    if p.kind == 'salu' and 'm0' in p.sw and c.kind == 'vmem' and c.ldsdma: n = max(n, 1)
    if p.stdata and (p.stdata & c.vw):
        n = max(n, 2 if c.kind in VALU_KINDS else 1)
    return n

class Asm:
    def __init__(self):
        self.lines = []; self.hist = []; self.nops = 0; self.count = 0
    def raw(self, text):
        self.lines.append(text)
    def comment(self, text):
        self.lines.append('    ; ' + text)
    def label(self, name, keep=True):
        self.lines.append(name + ':')
        if not keep: self.hist = []
    def __call__(self, text):
        for t in text.split('\n'):
            t = t.strip()
            if not t: continue
            if t.startswith(';'): self.lines.append('    ' + t); continue
            if t.endswith(':'): self.label(t[:-1]); continue
            self.emit(t)
    def emit(self, t):
        c = Ins(t)
        req = 0; dist = 0
        for p in reversed(self.hist):
            r = need(p, c) - dist
            if r > req: req = r
            dist += p.states
            if dist > 24: break
        while req > 0:
            k = min(req, 16)
            nop = Ins('s_nop %d' % (k - 1))
            self.lines.append('    s_nop %d' % (k - 1)); self.hist.append(nop); self.nops += 1
            req -= k
        self.lines.append('    ' + t); self.hist.append(c); self.count += 1
        if len(self.hist) > 64: self.hist = self.hist[-40:]
    def text(self):
        return '\n'.join(self.lines) + '\n'


def schedule(asm, instrs):
    ins = [Ins(t) for t in instrs]
    n = len(ins)
    preds = [set() for _ in range(n)]; succs = [set() for _ in range(n)]
    for j in range(n):
        for i in range(j):
            a, b = ins[i], ins[j]
            raw = (a.vw & b.vr) or (a.sw & b.sr)
            war = (a.vr & b.vw) or (a.sr & b.sw)
            waw = (a.vw & b.vw) or (a.sw & b.sw)
            if raw or war or waw:
                preds[j].add(i); succs[i].add(j)
    prio = [0] * n
    for i in reversed(range(n)):
        best = 0
        for j in succs[i]:
            best = max(best, prio[j] + 1 + need(ins[i], ins[j]))
        prio[i] = best
    done = [False] * n; left = n
    mfma_busy = 0
    while left:
        ready = [i for i in range(n) if not done[i] and all(done[p] for p in preds[i])]
        def cost(i):
            c = ins[i]; req = 0; dist = 0
            for p in reversed(asm.hist):
                r = need(p, c) - dist
                if r > req: req = r
                dist += p.states
                if dist > 24: break
            if c.kind == 'mfma' and mfma_busy > 0: req = max(req, mfma_busy)
            return req
        ready.sort(key=lambda i: (cost(i), -prio[i], i))
        i = ready[0]
        asm.emit(instrs[i])
        done[i] = True; left -= 1
        if ins[i].kind == 'mfma': mfma_busy = ins[i].passes // 2
        elif mfma_busy > 0: mfma_busy -= 1
```

```python
import sys, os, struct
from asmgen import Asm, schedule

NAME = 'interleave_layers__sliding_block_cached__glu_gated_swiglu__decode'
KN = NAME + '_kernel'

WS_QA = 0x0000
WS_ML = 0x4000
WS_QB = 0x18000
WS_Y = 0x20000
WS_EPOCH = 0x60000
WS_AG = 0x70000
WS_OP = 0x80000
WS_STAMP = 0x200000
AG_O, AG_X1, AG_H, AG_X2, AG_Q1 = 0, 2048, 4096, 6144, 7168
L_Q = 0; L_P = 1280; L_M = 2304; L_YZ = 2368; L_F = 2624; L_X = 2880
L_WQ, L_WO, L_W1, L_W3, L_W2, L_V, L_K = 4096, 20480, 36864, 45056, 53248, 61440, 94208
MS_WQ, MS_K, MS_V, MS_WO, MS_W13, MS_W2, F_X0, F_DONE = (L_F + 4*i for i in range(8))
F_PF = L_F + 32
F_O, F_X1, F_X2, F_MODE = L_F + 48, L_F + 56, L_F + 64, L_F + 68
F_Y, F_Z = L_F + 80, L_F + 96
FA_O, FA_X1, FA_H, FA_X2 = L_F + 144, L_F + 152, L_F + 160, L_F + 168
LDS_BYTES = 126976
NA_POLL = 256
NWAVES = 9
SPIN = 1 << 17
C_SCALE = 0.08838834764831845 * 1.4426950408889634
def f2u(x): return struct.unpack('<I', struct.pack('<f', x))[0]

sX, sK, sV, sWQ, sWO, sW1, sW3, sW2, sOUT, sDBG, sWS = 4, 6, 8, 10, 12, 16, 18, 20, 22, 24, 26
sG, sJ, sW, sWL, sE, sT, sMode, sPass, sSpin = 28, 29, 30, 31, 32, 33, 34, 35, 44
sA, sB, sC, sD = 45, 46, 47, 48
sMaskA, sMaskB, sMaskC = 50, 52, 54
sHi, sPerm, sCs, sF00 = 56, 57, 58, 59
sTmp2 = 60
sStamp0 = 64

def P(r, n=1): return 'v%d' % r if n == 1 else 'v[%d:%d]' % (r, r + n - 1)
def S2(r): return 's[%d:%d]' % (r, r + 1)
def DPP(q): return q + ' row_mask:0xf bank_mask:0xf'

class Regs:
    def __init__(self, first=2, limit=168): self.n = first; self.limit = limit
    def __call__(self, n=1, align=1):
        self.n = (self.n + align - 1) // align * align
        r = self.n; self.n += n
        assert self.n <= self.limit, 'out of VGPRs'
        return r

def make_plan(name, D1, D2):
    T = lambda t, a, b, d: [(t, i, d) for i in range(a, b)]
    def mix(x, y, k=1):
        out = []; x = list(x); y = list(y)
        while x or y:
            out += x[:k]; x = x[k:]
            out += y[:1]; y = y[1:]
        return out
    head = T('pq', 0, 2, 64) + T('wq', 0, 16, 64)
    if name == 'pf':
        p = head + T('k', 0, 16, 44) + T('k', 16, 32, D1) + T('v', 0, 32, D1) \
            + T('po', 0, 2, D1) + T('wo', 0, 16, D2) + T('p1', 0, 1, D2) + T('p3', 0, 1, D2) + T('p2', 0, 1, D2) + T('w1', 0, 8, D2) + T('w3', 0, 8, D2) + T('w2', 0, 8, D2)
    elif name == 'pfb':
        p = head + T('k', 0, 32, D1) + T('v', 0, 32, D1) \
            + T('po', 0, 2, D1) + T('wo', 0, 16, D2) + T('p1', 0, 1, D2) + T('p3', 0, 1, D2) + T('p2', 0, 1, D2) + T('w1', 0, 8, D2) + T('w3', 0, 8, D2) + T('w2', 0, 8, D2)
    elif name == 'e1':
        p = head + T('k', 0, 16, 44) + T('k', 16, 32, D1) + T('po', 0, 2, D1) + T('v', 0, 16, D1) + T('p1', 0, 1, D1) + T('p3', 0, 1, D1) + T('p2', 0, 1, D1) \
            + T('v', 16, 32, D1) + T('wo', 0, 16, D2) + T('w1', 0, 8, D2) + T('w3', 0, 8, D2) + T('w2', 0, 8, D2)
    else: raise ValueError(name)
    return p

class Gen:
    def __init__(self, stamps=False, nt_kv=True, nt_w=True, nt_pf=False, force_slow=False, onepass=False, depth=24, depth2=4, plan='pf',
                 single=True, dbgtime=False, sleepx=1):
        self.a = Asm(); self.stamps = stamps; self.nlab = 0; self.deferred = []; self.nstamp = {}
        self.nt_kv = ' nt' if nt_kv else ''; self.nt_w = ' nt' if nt_w else ''; self.nt_pf = ' nt' if nt_pf else ''
        self.force_slow = force_slow; self.onepass = onepass; self.single = single; self.dbgtime = dbgtime; self.sleepx = sleepx
        self.plan = make_plan(plan, depth, depth2)
    def lab(self, p):
        self.nlab += 1; return 'L_%s_%d' % (p, self.nlab)
    def stamp(self, role, name, once=False, pro=False):
        if not self.stamps: return
        if self.stamps == 'min':
            if name not in ('start', 'end'): return
        elif name in ('start', 'end'): pass
        elif (self.stamps == 'pro') != pro: return
        lst = self.nstamp.setdefault(role, [])
        keys = [name + '0'] if once else [name + '0', name + '1']
        for k in keys:
            if k not in lst: lst.append(k)
        assert len(lst) <= 19, 'too many stamps'
        idx = [lst.index(k) for k in keys]
        r = lambda i: f's[{sStamp0+2*i}:{sStamp0+2*i+1}]'
        if once:
            self.a(f's_memrealtime {r(idx[0])}'); return
        l1 = self.lab('st'); l2 = self.lab('st')
        self.a(f's_cmp_eq_u32 s{sPass}, 0\ns_cbranch_scc0 {l1}\ns_memrealtime {r(idx[0])}\ns_branch {l2}\n{l1}:\ns_memrealtime {r(idx[1])}\n{l2}:')
    def dump_stamps(self):
        if not self.stamps: return
        a = self.a
        a('s_waitcnt lgkmcnt(0)')
        a(f's_lshl_b32 s{sA}, s2, 4\ns_add_u32 s{sA}, s{sA}, s{sW}\ns_lshl_b32 s{sA}, s{sA}, 7\ns_add_u32 s{sA}, s{sA}, {WS_STAMP}')
        a('s_mov_b64 exec, 1')
        a(f'v_mov_b32 v2, s{sA}')
        for i in range(19):
            a(f'v_mov_b32 v3, s{sStamp0+2*i}\nglobal_store_dword v2, v3, {S2(sWS)} offset:{4*i}\ns_nop 0')
        a('s_waitcnt vmcnt(0)')
    def publish(self, store):
        a = self.a
        if self.force_slow:
            a(store + ' sc1'); return
        ls = self.lab('slow'); lr = self.lab('ret')
        a(f's_cmp_lg_u32 s{sMode}, 0\ns_cbranch_scc1 {ls}')
        a(store)
        a.label(lr)
        self.deferred.append((ls, store + ' sc1', lr))
    def flush_deferred(self):
        for ls, st, lr in self.deferred:
            self.a.label(ls, keep=False); self.a(st); self.a(f's_branch {lr}')
        self.deferred = []
    def spin_init(self, n=SPIN): self.a(f's_mov_b32 s{sSpin}, {n}')
    def spin_tail(self, loop, code, sleep=0):
        a = self.a
        if sleep: a(f's_sleep {sleep}')
        a(f's_sub_u32 s{sSpin}, s{sSpin}, 1\ns_cbranch_scc0 {loop}\ns_mov_b32 s{sA}, {code}\ns_branch L_fail')
    def wait_flag(self, vaddr, off, n, vtmp, code, sleep=1, extra=None):
        a = self.a; lp = self.lab('wf'); ok = self.lab('ok')
        self.spin_init()
        a.label(lp)
        mn = {1: 'ds_read_b32', 2: 'ds_read_b64', 4: 'ds_read_b128'}[n]
        a(f'{mn} {P(vtmp, n)}, {P(vaddr)} offset:{off}')
        if extra: a(extra)
        a('s_waitcnt lgkmcnt(0)')
        if n == 2: a(f'v_and_b32 {P(vtmp)}, {P(vtmp)}, {P(vtmp+1)}')
        if n == 4: a(f'v_and_b32 {P(vtmp)}, {P(vtmp)}, {P(vtmp+1)}\nv_and_b32 {P(vtmp+2)}, {P(vtmp+2)}, {P(vtmp+3)}\nv_and_b32 {P(vtmp)}, {P(vtmp)}, {P(vtmp+2)}')
        a(f'v_cmp_eq_u32 vcc, 0, {P(vtmp)}')
        a(f's_cbranch_vccz {ok}')
        self.spin_tail(lp, code, sleep)
        a.label(ok)
    def set_flag(self, vaddr, off, vOneI):
        self.a(f's_mov_b64 exec, 1\nds_write_b32 {P(vaddr)}, {P(vOneI)} offset:{off}\ns_mov_b64 exec, -1')
    def allred(self, op, y, t, strides=(4, 8), rows=True):
        L = [f'{op}_dpp {P(y)}, {P(y)}, {P(y)} ' + DPP(f'row_ror:{s}') for s in strides]
        if rows:
            for sw in ('v_permlane16_swap_b32', 'v_permlane32_swap_b32'):
                L += [f'v_mov_b32 {P(t)}, {P(y)}', f'{sw} {P(y)}, {P(t)}', f'{op} {P(y)}, {P(y)}, {P(t)}']
        return L
    def poll_dense(self, R, n, vaddr, off, e, code):
        a = self.a; lp = self.lab('pd'); ok = self.lab('ok')
        self.spin_init()
        a.label(lp)
        a(f'global_load_dwordx{n} {P(R,n)}, {P(vaddr)}, {S2(sWS)} offset:{off} sc1\ns_waitcnt vmcnt(0)')
        if n == 4: a(f'v_max3_u32 {P(e)}, {P(R)}, {P(R+1)}, {P(R+2)}\nv_max_u32 {P(e)}, {P(e)}, {P(R+3)}')
        else: a(f'v_max_u32 {P(e)}, {P(R)}, {P(R+1)}')
        a(f'v_cmp_eq_u32 vcc, -1, {P(e)}\ns_cbranch_vccz {ok}')
        self.spin_tail(lp, code)
        a.label(ok)
    def poll_tag16(self, R, e, vaddr, vT, code, limit=None, onfail=None):
        a = self.a; lp = self.lab('pt'); ok = self.lab('ok')
        self.spin_init(limit or SPIN)
        a.label(lp)
        a(f'global_load_dwordx4 {P(R,4)}, {P(vaddr)}, {S2(sWS)} sc1\nglobal_load_dwordx4 {P(R+4,4)}, {P(vaddr)}, {S2(sWS)} offset:16 sc1\ns_waitcnt vmcnt(0)')
        a(f'v_bitop3_b32 {P(e)}, {P(R)}, {P(R+1)}, {P(vT)} bitop3:0x7e\nv_bitop3_b32 {P(e+1)}, {P(R+4)}, {P(R+5)}, {P(vT)} bitop3:0x7e\nv_or_b32 {P(e)}, {P(e)}, {P(e+1)}')
        a(f'v_cmp_ne_u16 vcc, 0, {P(e)}\ns_cbranch_vccz {ok}')
        if onfail: a(f's_sub_u32 s{sSpin}, s{sSpin}, 1\ns_cbranch_scc0 {lp}\ns_branch {onfail}')
        else: self.spin_tail(lp, code)
        a.label(ok)
    def sched(self, L): schedule(self.a, L)

    def build(self):
        a = self.a
        a.raw(f'.amdgcn_target "amdgcn-amd-amdhsa--gfx950"\n.text\n.globl {KN}\n.p2align 8\n.type {KN},@function\n{KN}:')
        a('s_cmp_ge_u32 s2, 256\ns_cbranch_scc1 L_end')
        a(f's_load_dwordx16 s[4:19], s[0:1], 0\ns_load_dwordx8 s[20:27], s[0:1], 64')
        a(f'v_lshrrev_b32 v2, 6, v0\nv_and_b32 v1, 63, v0\ns_and_b32 s{sG}, s2, 7\ns_lshr_b32 s{sJ}, s2, 3')
        a(f'v_readfirstlane_b32 s{sW}, v2')
        a(f's_mov_b32 s{sPass}, 0')
        if self.stamps:
            for i in range(19): a(f's_mov_b32 s{sStamp0+2*i}, 0')
        a(f's_and_b32 s{sWL}, s{sW}, 3')
        a(f's_cmp_eq_u32 s{sW}, 8\ns_cbranch_scc0 L_AD')
        self.build_L()
        a.label('L_AD', keep=False)
        a('s_barrier')
        a(f's_cmp_ge_u32 s{sW}, 4\ns_cbranch_scc1 L_D')
        self.build_A()
        self.build_D()
        self.flush_deferred()
        a.label('L_fail', keep=False)
        a(f's_mov_b64 exec, 1\nv_mov_b32 v2, s{sA}\nv_mov_b32 v3, 0\nglobal_store_dword v3, v2, {S2(sDBG)}\ns_waitcnt vmcnt(0)')
        a.label('L_end')
        a('s_endpgm')
        return a.text()

    def build_L(self):
        a = self.a; r = Regs(); vl = 1
        vWQ, vK0, vV0, vV1, vWo, vFo, vW2o = r(), r(4), r(), r(), r(), r(), r()
        vOneI, vZ, t0, t1, vPq, vPo, vPf, vP2, vDum = r(), r(), r(), r(), r(), r(), r(), r(), r()
        G, J = f's{sG}', f's{sJ}'
        self.stamp('L', 'start', once=True)
        a(f'v_mov_b32 {P(vZ)}, 0\nv_lshlrev_b32 {P(t0)}, 2, {P(vl)}\nds_write_b32 {P(t0)}, {P(vZ)} offset:{L_F}\nv_mov_b32 {P(vOneI)}, 1')
        a(f'v_lshrrev_b32 {P(t0)}, 1, {P(vl)}\nv_and_b32 {P(t1)}, 1, {P(vl)}\nv_lshlrev_b32 {P(t1)}, 4, {P(t1)}\ns_lshl_b32 s{sA}, {G}, 10\ns_lshl_b32 s{sB}, {J}, 5\ns_add_u32 s{sA}, s{sA}, s{sB}')
        a(f'v_lshl_add_u32 {P(vWQ)}, {P(t0)}, 13, {P(t1)}\nv_add_u32 {P(vWQ)}, s{sA}, {P(vWQ)}')
        a(f'v_lshl_add_u32 {P(vW2o)}, {P(t0)}, 10, {P(t1)}\nv_add_u32 {P(vW2o)}, s{sB}, {P(vW2o)}')
        a(f'v_lshrrev_b32 {P(t0)}, 3, {P(vl)}\nv_and_b32 {P(t1)}, 7, {P(vl)}\nv_lshlrev_b32 {P(t1)}, 7, {P(t1)}\nv_lshl_add_u32 {P(vPq)}, {P(t0)}, 13, {P(t1)}')
        a(f's_lshl_b32 s{sA}, {J}, 17\ns_lshl_b32 s{sB}, {G}, 10\ns_add_u32 s{sA}, s{sA}, s{sB}\nv_add_u32 {P(vPq)}, s{sA}, {P(vPq)}')
        a('s_waitcnt lgkmcnt(0)\ns_barrier')
        self.stamp('L', 'ka', once=True, pro=True)
        SR = {'wq': 36, 'k': 40, 'v': 52, 'wo': 56, 'w1': 60, 'w3': 4, 'w2': 8}
        def mk(name, ptr, nb):
            q = SR[name]
            a(f's_mov_b32 s{q}, s{ptr}\ns_and_b32 s{q+1}, s{ptr+1}, 0xffff\ns_mov_b32 s{q+2}, {nb}\ns_mov_b32 s{q+3}, 0x20000')
        sKV, sWOb, sW2b = 45, 46, 47
        ntw, ntk, ntp = self.nt_w, self.nt_kv, self.nt_pf
        tiles = {
            'wq': [(vWQ, f's_mov_b32 s{sD}, {n*262144}', L_WQ + 1024*n, ntw) for n in range(16)],
            'k': [(vK0 + (n & 3), f's_add_u32 s{sD}, s{sKV}, {1024*n}', L_K + 1024*n, ntk) for n in range(32)],
            'v': [(vV1 if n & 1 else vV0, f's_add_u32 s{sD}, s{sKV}, {1024*n}', L_V + 1024*n, ntk) for n in range(32)],
            'wo': [(vWo, f's_add_u32 s{sD}, s{sWOb}, {8192*n}', L_WO + 1024*n, ntw) for n in range(16)],
            'w1': [(vFo, f's_mov_b32 s{sD}, {229376*n}', L_W1 + 1024*n, ntw) for n in range(8)],
            'w3': [(vFo, f's_mov_b32 s{sD}, {229376*n}', L_W3 + 1024*n, ntw) for n in range(8)],
            'w2': [(vW2o, f's_add_u32 s{sD}, s{sW2b}, {32768*n}', L_W2 + 1024*n, ntw) for n in range(8)],
            'pq': [(vPq, f's_mov_b32 s{sD}, {i*65536}', None, ' nt') for i in range(2)],
            'po': [(vPo, f's_add_u32 s{sD}, s{sWOb}, {i*8192}', None, ntp) for i in range(2)],
            'p1': [(vPf, f's_mov_b32 s{sD}, 0', None, ntp)],
            'p3': [(vPf, f's_mov_b32 s{sD}, 0', None, ntp)],
            'p2': [(vP2, f's_add_u32 s{sD}, s{sW2b}, 0', None, ntp)],
        }
        for pf, t in (('pq', 'wq'), ('po', 'wo'), ('p1', 'w1'), ('p3', 'w3'), ('p2', 'w2')): SR[pf] = SR[t]
        plan = self.plan
        assert sorted((t, i) for t, i, d in plan) == sorted((t, i) for t in tiles for i in range(len(tiles[t])))
        last = {}
        for pos, (t, i, d) in enumerate(plan): last[t] = pos
        ms = [(last['wq'], MS_WQ), (last['k'], MS_K), (last['v'], MS_V), (last['wo'], MS_WO), (max(last['w1'], last['w3']), MS_W13), (last['w2'], MS_W2)]
        def flag(fl):
            a(f's_mov_b64 exec, 1\nds_write_b32 {P(vZ)}, {P(vOneI)} offset:{fl}\ns_mov_b64 exec, -1')
            self.stamp('L', 'ms%d' % fl, once=True, pro=True)
        def issue(pos):
            t, i, depth = plan[pos]
            voff, so, lds, nt = tiles[t][i]; srd = SR[t]
            if pos >= depth: a(f's_waitcnt vmcnt({depth-1})')
            for e, fl in list(ms):
                if pos - depth >= e: flag(fl); ms.remove((e, fl))
            a(so)
            if lds is None:
                a(f'buffer_load_dword {P(vDum)}, {P(voff)}, s[{srd}:{srd+3}], s{sD} offen{nt}')
            else:
                a(f's_mov_b32 m0, {lds}')
                a(f'buffer_load_dwordx4 {P(voff)}, s[{srd}:{srd+3}], s{sD} offen{nt} lds')
        mk('wq', sWQ, 4194304)
        nfirst = 18
        for pos in range(nfirst):
            assert plan[pos][0] in ('wq', 'pq'); issue(pos)
        a(f'v_lshrrev_b32 {P(t0)}, 4, {P(vl)}\nv_and_b32 {P(t1)}, 15, {P(vl)}\nv_xor_b32 {P(vK0)}, {P(t1)}, {P(t0)}\nv_lshlrev_b32 {P(vK0)}, 4, {P(vK0)}\nv_lshl_add_u32 {P(vK0)}, {P(t0)}, 8, {P(vK0)}')
        for i in range(1, 4): a(f'v_xor_b32 {P(vK0+i)}, {64*i}, {P(vK0)}')
        a(f'v_lshlrev_b32 {P(vV0)}, 1, {P(t0)}\nv_xor_b32 {P(t1)}, {P(t1)}, {P(vV0)}\nv_lshlrev_b32 {P(t1)}, 4, {P(t1)}\nv_lshl_add_u32 {P(vV0)}, {P(t0)}, 8, {P(t1)}\nv_xor_b32 {P(vV1)}, 128, {P(vV0)}')
        mk('k', sK, 67108864); mk('v', sV, 67108864)
        a(f's_lshl_b32 s{sKV}, {G}, 23\ns_lshl_b32 s{sB}, {J}, 15\ns_add_u32 s{sKV}, s{sKV}, s{sB}\ns_add_u32 s{sKV}, s{sKV}, 7340032')
        pos = nfirst
        while plan[pos][0] == 'k' and pos < nfirst + 16:
            issue(pos); pos += 1
        a(f'v_lshrrev_b32 {P(t0)}, 1, {P(vl)}\nv_and_b32 {P(t0)}, 3, {P(t0)}\nv_lshlrev_b32 {P(t0)}, 7, {P(t0)}')
        a(f'v_lshrrev_b32 {P(t1)}, 5, {P(vl)}\nv_lshl_add_u32 {P(t0)}, {P(t1)}, 2, {P(t0)}')
        a(f'v_lshrrev_b32 {P(t1)}, 3, {P(vl)}\nv_and_b32 {P(t1)}, 3, {P(t1)}\nv_add_u32 {P(t0)}, {P(t0)}, {P(t1)}\nv_lshlrev_b32 {P(t0)}, 10, {P(t0)}')
        a(f'v_and_b32 {P(t1)}, 1, {P(vl)}\nv_lshlrev_b32 {P(t1)}, 4, {P(t1)}\ns_lshl_b32 s{sB}, {J}, 5\nv_add3_u32 {P(vWo)}, {P(t0)}, {P(t1)}, s{sB}')
        a(f's_movk_i32 s{sB}, 3584\nv_mul_lo_u32 {P(vFo)}, {P(vl)}, s{sB}\ns_mul_i32 s{sB}, {G}, 448\ns_lshl_b32 s{sC}, {J}, 4\ns_add_u32 s{sB}, s{sB}, s{sC}')
        a(f's_cmp_ge_u32 {J}, 28\ns_cselect_b32 s{sB}, 0x7f000000, s{sB}\nv_add_u32 {P(vFo)}, s{sB}, {P(vFo)}')
        a(f's_lshl_b32 s{sB}, {J}, 14\nv_lshlrev_b32 {P(vPo)}, 7, {P(vl)}\nv_add_u32 {P(vPo)}, s{sB}, {P(vPo)}')
        a(f'v_lshrrev_b32 {P(t0)}, 2, {P(vl)}\ns_lshl_b32 s{sB}, {J}, 4\nv_add_u32 {P(t0)}, s{sB}, {P(t0)}\ns_movk_i32 s{sB}, 3584\nv_mul_lo_u32 {P(t0)}, {P(t0)}, s{sB}')
        a(f'v_and_b32 {P(t1)}, 3, {P(vl)}\nv_lshlrev_b32 {P(t1)}, 7, {P(t1)}\ns_mul_i32 s{sB}, {G}, 448\ns_and_b32 s{sB}, s{sB}, 0xffffff80\nv_add3_u32 {P(vPf)}, {P(t0)}, {P(t1)}, s{sB}')
        a(f's_mul_i32 s{sB}, {J}, 7168\nv_lshlrev_b32 {P(vP2)}, 7, {P(vl)}\nv_add_u32 {P(vP2)}, s{sB}, {P(vP2)}\nv_cmp_gt_u32 vcc, 56, {P(vl)}\nv_mov_b32 {P(t0)}, 0x7f000000\nv_cndmask_b32 {P(vP2)}, {P(t0)}, {P(vP2)}, vcc')
        mk('wo', sWO, 4194304); mk('w1', sW1, 1835008); mk('w3', sW3, 1835008); mk('w2', sW2, 1835008)
        a(f's_lshl_b32 s{sWOb}, {G}, 19\ns_mul_i32 s{sW2b}, {G}, {224*1024}')
        while pos < len(plan):
            issue(pos); pos += 1
        n = len(plan)
        for e, fl in sorted(ms):
            a(f's_waitcnt vmcnt({n - 1 - e})'); flag(fl)
        a('s_waitcnt lgkmcnt(0)')
        self.dump_stamps()
        a('s_endpgm')

    def build_A(self):
        a = self.a; r = Regs()
        vl = 1
        vKo, vOneI, vP4, vP32, vQa, vPw, vPr, vMw, vMr, vVa0, vVa1, vOPa = (r() for _ in range(12))
        vT8, vZ, vYa, vYL, vX1p, vX2p, vX0, vX1, vOut, vT32 = (r() for _ in range(10))
        t0, t1, t2, t3 = (r() for _ in range(4))
        K, V, Q, Sx, Pw, D, M4, AL, R = r(32, 4), r(32), r(16), r(8), r(4), r(32), r(4), r(4), r(4)
        vC = r(2, 2)
        Pa, O = Q, Sx
        G, J, W = f's{sG}', f's{sJ}', f's{sWL}'
        self.stamp('A', 'start', once=True)
        if self.dbgtime: a('s_memrealtime s[96:97]')
        a('s_waitcnt lgkmcnt(0)')
        a(f's_load_dword s{sE}, {S2(sWS)}, {WS_EPOCH}')
        a(f'v_mov_b32 {P(vOneI)}, 1\nv_mov_b32 {P(vP4)}, 0\nv_mov_b32 {P(vP32)}, 0\nv_mov_b32 {P(vZ)}, 0')
        a(f'v_and_b32 {P(t0)}, 3, {P(vl)}\nv_lshrrev_b32 {P(t2)}, 4, {P(vl)}\nv_mul_u32_u24 {P(t1)}, 320, {P(t0)}\nv_lshl_add_u32 {P(t1)}, {P(t2)}, 4, {P(t1)}\nv_add_u32 {P(vQa)}, {L_Q}, {P(t1)}')
        a(f'v_lshlrev_b32 {P(t1)}, 6, {P(t2)}\nv_lshl_add_u32 {P(t1)}, {P(t0)}, 4, {P(t1)}\nv_add_u32 {P(vPr)}, {L_P}, {P(t1)}\ns_lshl_b32 s{sB}, {W}, 8\nv_add_u32 {P(vPw)}, s{sB}, {P(vPr)}')
        a(f'v_lshlrev_b32 {P(t1)}, 4, {P(t0)}\nv_add_u32 {P(vMr)}, {L_M}, {P(t1)}\ns_lshl_b32 s{sB}, {W}, 2\nv_add_u32 {P(vMw)}, s{sB}, {P(vMr)}')
        a(f'v_and_b32 {P(t1)}, 15, {P(vl)}\nv_lshrrev_b32 {P(t1)}, 2, {P(t1)}')
        a(f'v_and_b32 {P(t3)}, 1, {P(t2)}\nv_lshlrev_b32 {P(t3)}, 3, {P(t3)}\nv_lshl_add_u32 {P(t3)}, {P(t1)}, 1, {P(t3)}')
        a(f'v_lshl_add_u32 {P(t1)}, {P(t2)}, 2, {P(t1)}\nv_lshlrev_b32 {P(t1)}, 8, {P(t1)}')
        a(f'v_lshrrev_b32 {P(vVa1)}, 1, {P(t0)}\ns_lshl_b32 s{sB}, {W}, 2\nv_add_u32 {P(vVa1)}, s{sB}, {P(vVa1)}\nv_xor_b32 {P(vVa1)}, {P(vVa1)}, {P(t3)}')
        a(f'v_lshl_add_u32 {P(t1)}, {P(vVa1)}, 4, {P(t1)}\nv_and_b32 {P(t3)}, 1, {P(t0)}\nv_lshl_add_u32 {P(t1)}, {P(t3)}, 3, {P(t1)}')
        a(f'v_add_u32 {P(vVa0)}, {L_V}, {P(t1)}\nv_xor_b32 {P(vVa1)}, 32, {P(t1)}\nv_add_u32 {P(vVa1)}, {L_V}, {P(vVa1)}')
        a(f'v_and_b32 {P(t1)}, 15, {P(vl)}\nv_xor_b32 {P(t3)}, {P(t1)}, {P(t2)}\nv_lshlrev_b32 {P(t3)}, 4, {P(t3)}\nv_lshl_add_u32 {P(vKo)}, {P(t1)}, 8, {P(t3)}')
        a(f's_lshl_b32 s{sB}, {G}, 16\ns_lshl_b32 s{sC}, {W}, 14\ns_add_u32 s{sB}, s{sB}, s{sC}\ns_lshl_b32 s{sC}, {J}, 6\ns_add_u32 s{sB}, s{sB}, s{sC}\ns_add_u32 s{sB}, s{sB}, {WS_OP}')
        a(f'v_lshlrev_b32 {P(t1)}, 11, {P(t2)}\nv_lshl_add_u32 {P(t1)}, {P(t0)}, 4, {P(t1)}\nv_add_u32 {P(vOPa)}, s{sB}, {P(t1)}')
        a(f'v_and_b32 {P(t1)}, 15, {P(vl)}\nv_lshrrev_b32 {P(t1)}, 1, {P(t1)}\ns_lshl_b32 s{sB}, {J}, 3\nv_add_u32 {P(t1)}, s{sB}, {P(t1)}')
        a(f'v_lshrrev_b32 {P(t3)}, 6, {P(t1)}\nv_lshlrev_b32 {P(t3)}, 14, {P(t3)}\nv_and_b32 {P(t1)}, 63, {P(t1)}\nv_lshl_add_u32 {P(t1)}, {P(t1)}, 7, {P(t3)}')
        a(f'v_and_b32 {P(t3)}, 1, {P(vl)}\nv_lshl_add_u32 {P(t3)}, {P(t2)}, 1, {P(t3)}\nv_lshlrev_b32 {P(t3)}, 3, {P(t3)}')
        a(f's_lshl_b32 s{sB}, {W}, 13\ns_add_u32 s{sB}, s{sB}, {WS_Y}\nv_add3_u32 {P(vYa)}, {P(t1)}, {P(t3)}, s{sB}')
        a(f'v_add_u32 {P(vYL)}, {L_YZ}, {P(t3)}')
        a(f's_lshl_b32 s{sB}, {J}, 5\nv_lshrrev_b32 {P(t3)}, 1, {P(t3)}\nv_add_u32 {P(vOut)}, s{sB}, {P(t3)}')
        a(f'global_load_dword {P(vX1)}, {P(vOut)}, {S2(sX)}')
        a(f's_lshl_b32 s{sB}, {G}, 13\ns_add_u32 s{sB}, s{sB}, {WS_AG + AG_X1}\nv_add_u32 {P(vX1p)}, s{sB}, {P(vOut)}\nv_add_u32 {P(vX2p)}, {AG_X2 - AG_X1}, {P(vX1p)}')
        a(f's_mov_b32 s{sHi}, 0xffff0000\ns_mov_b32 s{sF00}, 0xffffff00\nv_mov_b32 {P(vC)}, {f2u(C_SCALE)}\nv_mov_b32 {P(vC+1)}, {P(vC)}')
        a(f's_mov_b32 s{sMaskB}, 0x00030003\ns_mov_b32 s{sMaskB+1}, 0x00030003\ns_lshl_b32 s{sA}, {G}, 1\ns_lshl_b64 {S2(sMaskA)}, {S2(sMaskB)}, s{sA}')
        a(f's_mov_b32 s{sMaskC}, 0x000f000f\ns_mov_b32 s{sMaskC+1}, 0x000f000f')
        a('s_waitcnt lgkmcnt(0)')
        a(f's_add_u32 s{sT}, s{sE}, 1\nv_mov_b32 {P(vT32)}, s{sT}\nv_and_b32 {P(vT8)}, 0xff, {P(vT32)}')
        self.wait_flag(vZ, MS_K, 1, t0, 30, sleep=2)
        self.stamp('A', 'Kland', once=True, pro=True)
        a(f's_lshl_b32 s{sA}, {W}, 13\ns_add_u32 s{sA}, s{sA}, {L_K}')
        for kk in range(4):
            a(f'v_xor_b32 {P(t1)}, {64*kk}, {P(vKo)}\nv_add_u32 {P(t1)}, s{sA}, {P(t1)}')
            for T in range(2):
                a(f'ds_read_b128 {P(K+16*T+4*kk,4)}, {P(t1)} offset:{4096*T}')
        a('s_waitcnt vmcnt(0)')
        a(f'v_lshlrev_b32 {P(vX0)}, 16, {P(vX1)}\nv_and_b32 {P(vX1)}, s{sHi}, {P(vX1)}')
        self.wait_flag(vZ, F_X0, 1, t0, 31, sleep=1)
        a(f'ds_read_b32 {P(t0)}, {P(vZ)} offset:{F_MODE}\ns_waitcnt lgkmcnt(0)\nv_readfirstlane_b32 s{sMode}, {P(t0)}')
        a('s_branch L_A_q')
        a.label('L_A_loop', keep=False)
        a('s_barrier')
        a.label('L_A_q')
        self.stamp('A', 'X'); self.stamp('A', 'X', pro=True)
        for kk in range(4):
            a(f'ds_read_b128 {P(Q+4*kk,4)}, {P(vQa)} offset:{64*kk}')
        a('s_waitcnt lgkmcnt(0)')
        L = []
        for kk in range(4):
            for T in range(2):
                c = '0' if kk == 0 else P(Sx+4*T, 4)
                L.append(f'v_mfma_f32_16x16x32_bf16 {P(Sx+4*T,4)}, {P(K+16*T+4*kk,4)}, {P(Q+4*kk,4)}, {c}')
        L += [f'v_max3_f32 {P(t0)}, {P(Sx)}, {P(Sx+1)}, {P(Sx+2)}', f'v_max3_f32 {P(t1)}, {P(Sx+4)}, {P(Sx+5)}, {P(Sx+6)}',
              f'v_max3_f32 {P(t0)}, {P(t0)}, {P(Sx+3)}, {P(Sx+7)}', f'v_max_f32 {P(t0)}, {P(t0)}, {P(t1)}']
        L += self.allred('v_max_f32', t0, t1, strides=())
        L += [f'v_mul_f32 {P(t2)}, {P(vC)}, {P(t0)}', f'v_mov_b32 {P(t3)}, {P(t2)}']
        assert t3 == t2 + 1 and t2 % 2 == 0
        for i in range(4):
            L.append(f'v_pk_fma_f32 {P(Sx+2*i,2)}, {P(Sx+2*i,2)}, {P(vC,2)}, {P(t2,2)} neg_lo:[0,0,1] neg_hi:[0,0,1]')
        for i in range(8): L.append(f'v_exp_f32 {P(Sx+i)}, {P(Sx+i)}')
        for i in range(4): L.append(f'v_cvt_pk_bf16_f32 {P(Pw+i)}, {P(Sx+2*i)}, {P(Sx+2*i+1)}')
        self.sched(L)
        a(f's_mov_b64 exec, {S2(sMaskC)}\nds_write_b128 {P(vPw)}, {P(Pw,4)}\ns_mov_b64 exec, 15\nds_write_b32 {P(vMw)}, {P(t2)}\ns_mov_b64 exec, -1')
        lp0 = self.lab('pp0'); lp1 = self.lab('pp1')
        a(f's_cmp_eq_u32 s{sPass}, 0\ns_cbranch_scc1 {lp0}')
        a('s_waitcnt lgkmcnt(0)\ns_barrier')
        self.stamp('A', 'P')
        for gq in range(4): a(f'ds_read_b128 {P(Pa+4*gq,4)}, {P(vPr)} offset:{256*gq}')
        a(f'ds_read_b128 {P(M4,4)}, {P(vMr)}')
        a(f's_branch {lp1}')
        a.label(lp0, keep=False)
        a(f's_lshl_b32 s{sA}, {W}, 2\nv_mov_b32 {P(t1)}, s{sA}')
        self.set_flag(t1, F_PF, vOneI)
        self.wait_flag(vZ, F_PF, 4, M4, 32, sleep=0)
        self.stamp('A', 'P')
        for gq in range(4): a(f'ds_read_b128 {P(Pa+4*gq,4)}, {P(vPr)} offset:{256*gq}')
        a(f'ds_read_b128 {P(M4,4)}, {P(vMr)}')
        self.wait_flag(vZ, MS_V, 1, t0, 33, sleep=0)
        self.stamp('A', 'Vland', once=True); self.stamp('A', 'Vland', once=True, pro=True)
        for t in range(2):
            for gq in range(4):
                for hh in range(2):
                    a(f'ds_read_b64_tr_b16 {P(V + 16*t + 4*gq + 2*hh,2)}, {P(vVa0 if t == 0 else vVa1)} offset:{8192*gq + 4096*hh}')
        a.label(lp1)
        a(f'v_add_u32 {P(t1)}, 8192, {P(vOPa)}')
        a('s_waitcnt lgkmcnt(0)')
        L = []
        for t in range(2):
            for gq in range(4):
                L.append(f'v_mfma_f32_16x16x32_bf16 {P(D+16*t+4*gq,4)}, {P(V+16*t+4*gq,4)}, {P(Pa+4*gq,4)}, 0')
        L += [f'v_max3_f32 {P(t0)}, {P(M4)}, {P(M4+1)}, {P(M4+2)}', f'v_max_f32 {P(t0)}, {P(t0)}, {P(M4+3)}']
        L += [f'v_sub_f32 {P(AL+i)}, {P(M4+i)}, {P(t0)}' for i in range(4)]
        L += [f'v_exp_f32 {P(AL+i)}, {P(AL+i)}' for i in range(4)]
        for t in range(2):
            for gq in range(4):
                d = D + 16*t + 4*gq; alp = AL + (gq & 2); hi = gq & 1
                for h2 in range(2):
                    o = O + 4*t + 2*h2
                    if gq == 0: L.append(f'v_pk_mul_f32 {P(o,2)}, {P(d+2*h2,2)}, {P(alp,2)} op_sel:[0,{hi}] op_sel_hi:[1,{hi}]')
                    else: L.append(f'v_pk_fma_f32 {P(o,2)}, {P(d+2*h2,2)}, {P(alp,2)}, {P(o,2)} op_sel:[0,{hi},0] op_sel_hi:[1,{hi},1]')
        for i in range(8): L.append(f'v_and_or_b32 {P(O+i)}, {P(O+i)}, s{sF00}, {P(vT8)}')
        self.sched(L)
        a(f's_mov_b64 exec, {S2(sMaskC)}')
        if self.force_slow:
            a(f'global_store_dwordx4 {P(vOPa)}, {P(O,4)}, {S2(sWS)} sc1\nglobal_store_dwordx4 {P(t1)}, {P(O+4,4)}, {S2(sWS)} sc1')
        else:
            self.publish(f'global_store_dwordx4 {P(vOPa)}, {P(O,4)}, {S2(sWS)}')
            self.publish(f'global_store_dwordx4 {P(t1)}, {P(O+4,4)}, {S2(sWS)}')
        a('s_mov_b64 exec, -1')
        self.stamp('A', 'OPpub')
        lnext = self.lab('anext')
        a(f's_cmp_ge_u32 {W}, 2\ns_cbranch_scc1 {lnext}')
        self.colgather(R, vYa, 0, vYL, 0, vT8, vP32, F_Y, D, 20)
        self.stamp('A', 'S5got')
        self.resid_publish(R, vX0, vX1, vX1p, t2)
        self.set_flag(vP4, F_X1, vOneI)
        self.stamp('A', 'S5pub')
        lfin = self.lab('afin')
        a(f's_cmp_lg_u32 s{sPass}, 0\ns_cbranch_scc1 {lfin}')
        self.colgather(R, vYa, 0x10000, vYL, 64, vT8, vP32, F_Z, D, 22)
        self.stamp('A', 'S8got')
        self.resid_publish(R, vX0, vX1, vX2p, t2)
        self.set_flag(vZ, F_X2, vOneI)
        a.label(lnext)
        if self.onepass: a('s_branch L_A_end')
        a(f's_cmp_lg_u32 s{sPass}, 0\ns_cbranch_scc1 L_A_end')
        a(f's_mov_b32 s{sPass}, 1\ns_add_u32 s{sT}, s{sT}, 1\nv_mov_b32 {P(vT32)}, s{sT}\nv_and_b32 {P(vT8)}, 0xff, {P(vT32)}')
        a(f'v_add_u32 {P(vYa)}, 0x20000, {P(vYa)}\nv_add_u32 {P(vYL)}, 128, {P(vYL)}\nv_mov_b32 {P(vP4)}, 4\nv_mov_b32 {P(vP32)}, 32\nv_add_u32 {P(vX1p)}, 1024, {P(vX1p)}')
        a('s_branch L_A_loop')
        a.label(lfin, keep=False)
        a(f's_cmp_lg_u32 {G}, 0\ns_cbranch_scc1 L_A_end')
        self.colgather(R, vYa, 0x10000, vYL, 64, vT8, vP32, F_Z, D, 24, abort=(vZ, F_DONE, t3, 'L_A_end'))
        self.stamp('A', 'S8got')
        a(f'v_add_f32 {P(R)}, {P(R)}, {P(vX0)}\nv_add_f32 {P(R+1)}, {P(R+1)}, {P(vX1)}\nv_cvt_pk_bf16_f32 {P(t0)}, {P(R)}, {P(R+1)}')
        a(f's_mov_b64 exec, {S2(sMaskB)}\nglobal_store_dword {P(vOut)}, {P(t0)}, {S2(sOUT)}\ns_mov_b64 exec, -1')
        self.stamp('A', 'end', once=True)
        if self.dbgtime:
            a(f's_memrealtime s[98:99]\ns_waitcnt lgkmcnt(0)\ns_sub_u32 s98, s98, s96\ns_lshl_b32 s{sA}, {J}, 2\ns_and_b32 s{sA}, s{sA}, 63\nv_mov_b32 {P(t1)}, s{sA}\nv_mov_b32 {P(t2)}, s98\ns_mov_b64 exec, 1\nglobal_store_dword {P(t1)}, {P(t2)}, {S2(sDBG)}\ns_mov_b64 exec, -1')
        self.set_flag(vZ, F_DONE, vOneI)
        a(f's_cmp_lg_u32 s2, 0\ns_cbranch_scc1 L_A_end')
        a(f's_mov_b64 exec, 1\nv_mov_b32 {P(t1)}, {WS_EPOCH}\nglobal_store_dword {P(t1)}, {P(vT32)}, {S2(sWS)}')
        a.label('L_A_end', keep=False)
        a('s_mov_b64 exec, -1')
        self.dump_stamps()
        a('s_endpgm')

    def colgather(self, R, vYa, goff, vYL, loff, vT8, vP32, fl4, tmp4, code, abort=None):
        a = self.a
        if goff: a(f'v_add_u32 {P(R+3)}, {goff}, {P(vYa)}')
        addr = R + 3 if goff else vYa
        self.wait_flag(vP32, fl4, 4, tmp4, code, sleep=self.sleepx, extra=f'ds_read_b64 {P(R,2)}, {P(vYL)} offset:{loff}')
        a(f'v_xor_b32 {P(R)}, {P(R)}, {P(vT8)}\nv_xor_b32 {P(R+1)}, {P(R+1)}, {P(vT8)}')
        a(f's_not_b64 exec, {S2(sMaskA)}')
        lp = self.lab('cgr'); ok = self.lab('ok')
        self.spin_init()
        a.label(lp)
        a(f'global_load_dwordx2 {P(R,2)}, {P(addr)}, {S2(sWS)} sc1')
        if abort:
            vZ, fl, tmp, lab = abort
            a(f'ds_read_b32 {P(tmp)}, {P(vZ)} offset:{fl}\ns_waitcnt lgkmcnt(0)\nv_cmp_ne_u32 vcc, 0, {P(tmp)}\ns_cbranch_vccnz {lab}')
        a('s_waitcnt vmcnt(0)')
        a(f'v_xor_b32 {P(R)}, {P(R)}, {P(vT8)}\nv_xor_b32 {P(R+1)}, {P(R+1)}, {P(vT8)}\nv_or_b32 {P(R+2)}, {P(R)}, {P(R+1)}\nv_and_b32 {P(R+2)}, 0xff, {P(R+2)}\nv_cmp_ne_u32 vcc, 0, {P(R+2)}')
        a(f's_cbranch_vccz {ok}')
        self.spin_tail(lp, code + 1)
        a.label(ok)
        a('s_mov_b64 exec, -1')
        for s in (2, 4, 8):
            for q in (R, R + 1):
                a(f'v_add_f32_dpp {P(q)}, {P(q)}, {P(q)} ' + DPP(f'row_ror:{s}'))

    def resid_publish(self, R, vX0, vX1, vXp, t2):
        a = self.a
        a(f'v_add_f32 {P(R)}, {P(R)}, {P(vX0)}\nv_add_f32 {P(R+1)}, {P(R+1)}, {P(vX1)}\nv_cvt_pk_bf16_f32 {P(t2)}, {P(R)}, {P(R+1)}')
        a(f'v_min_u32 {P(R)}, 0xfffffffe, {P(t2)}')
        a(f's_mov_b64 exec, {S2(sMaskB)}')
        self.publish(f'global_store_dword {P(vXp)}, {P(R)}, {S2(sWS)}')
        a('s_mov_b64 exec, -1')
        a(f'v_lshlrev_b32 {P(vX0)}, 16, {P(t2)}\nv_and_b32 {P(vX1)}, s{sHi}, {P(t2)}')

    def build_D(self):
        a = self.a; r = Regs()
        vl = 1
        vTr, vTr13, vTr2, vAG, vAG2, vQA, vPubT, vQp, vHg, vHp, vOp, vYa, vYL = (r() for _ in range(13))
        vT32, vT16, vT16x, vT8, vZ, vOne, vOneI, vP4, vFl, vXL, vXH = (r() for _ in range(11))
        vQw, vPr, vMr, vMLa, vMLp, vOPa, vDum = (r() for _ in range(7))
        t0, t1, t2, t3, t4 = (r() for _ in range(5))
        WQ, WO, W13, W2 = r(16, 2), r(16), r(16), r(8)
        csq, cs13 = r(), r()
        XP = r(4, 4); R = r(12); ACC = r(16)
        y, s1, s2 = r(), r(), r()
        Gr = r(4, 4); ONE4 = r(4); Pa = r(16); M4 = r(4); Ga, Gb = r(4), r(4)
        wa, wb = M4, M4 + 1
        LL = ACC; Ra, Rb = R, R + 4
        G, J, W = f's{sG}', f's{sJ}', f's{sWL}'
        a.label('L_D', keep=False)
        self.stamp('D', 'start', once=True)
        a('s_waitcnt lgkmcnt(0)')
        self.stamp('D', 'ka', once=True, pro=True)
        a(f's_load_dword s{sE}, {S2(sWS)}, {WS_EPOCH}')
        lx = self.lab('d2')
        a(f's_cmp_lg_u32 {W}, 2\ns_cbranch_scc1 {lx}')
        a(f's_lshl_b32 s{sA}, {G}, 13\ns_lshl_b32 s{sB}, {J}, 8\ns_add_u32 s{sA}, s{sA}, s{sB}\ns_add_u32 s{sA}, s{sA}, {WS_AG}\nv_lshlrev_b32 {P(vDum)}, 4, {P(vl)}\nv_add_u32 {P(t4)}, s{sA}, {P(vDum)}')
        for i in range(4): a(f'v_mov_b32 {P(Gr+i)}, -1')
        a(f's_mov_b64 exec, 0xffff\nglobal_store_dwordx4 {P(t4)}, {P(Gr,4)}, {S2(sWS)} sc1')
        a(f's_lshl_b32 s{sA}, {G}, 11\ns_and_b32 s{sB}, {J}, 15\ns_lshl_b32 s{sB}, s{sB}, 7\ns_add_u32 s{sA}, s{sA}, s{sB}\nv_lshlrev_b32 {P(t0)}, 14, {P(vl)}\nv_add_u32 {P(t0)}, s{sA}, {P(t0)}')
        a(f's_mov_b64 exec, 3\nglobal_load_dword {P(vDum)}, {P(t0)}, {S2(sWS)} sc1\ns_mov_b64 exec, -1')
        a.label(lx)
        a(f'v_lshlrev_b32 {P(t0)}, 4, {P(vl)}\nglobal_load_dwordx4 {P(XP,4)}, {P(t0)}, {S2(sX)}')
        lx = self.lab('d0')
        a(f's_cmp_lg_u32 {W}, 0\ns_cbranch_scc1 {lx}')
        a(f's_getpc_b64 {S2(sTmp2)}')
        a.label('L_pc')
        a(f's_sub_u32 s{sTmp2}, s{sTmp2}, L_pc-{KN}\ns_subb_u32 s{sTmp2+1}, s{sTmp2+1}, 0')
        a(f's_and_b32 s{sA}, {J}, 1\ns_lshl_b32 s{sA}, s{sA}, 13\nv_lshlrev_b32 {P(t0)}, 6, {P(vl)}\nv_add_u32 {P(t0)}, s{sA}, {P(t0)}\nv_add_u32 {P(t1)}, 4096, {P(t0)}')
        a(f's_mov_b32 s{sA}, L_end-{KN}\nv_min_u32 {P(t0)}, s{sA}, {P(t0)}\nv_min_u32 {P(t1)}, s{sA}, {P(t1)}')
        a(f'global_load_dword {P(vDum)}, {P(t0)}, {S2(sTmp2)}\nglobal_load_dword {P(vDum)}, {P(t1)}, {S2(sTmp2)}')
        a.label(lx)
        a(f'v_lshrrev_b32 {P(t0)}, 4, {P(vl)}\nv_and_b32 {P(t1)}, 3, {P(vl)}\nv_and_b32 {P(t2)}, 15, {P(vl)}\nv_lshrrev_b32 {P(t2)}, 2, {P(t2)}')
        a(f's_lshl_b32 s{sA}, {W}, 3')
        a(f'v_lshlrev_b32 {P(t3)}, 12, {P(t0)}\nv_lshl_add_u32 {P(t3)}, {P(t1)}, 10, {P(t3)}\nv_lshl_add_u32 {P(t3)}, {P(t2)}, 5, {P(t3)}\nv_add_u32 {P(vTr)}, s{sA}, {P(t3)}')
        a(f'v_lshlrev_b32 {P(t3)}, 11, {P(t0)}\nv_lshl_add_u32 {P(t3)}, {P(t1)}, 9, {P(t3)}')
        a(f'v_lshl_add_u32 {P(vTr2)}, {P(t2)}, 5, {P(t3)}\nv_add_u32 {P(vTr2)}, s{sA}, {P(vTr2)}')
        a(f's_lshr_b32 s{sB}, {W}, 1\ns_lshl_b32 s{sB}, s{sB}, 3\nv_lshl_add_u32 {P(vTr13)}, {P(t2)}, 4, {P(t3)}\nv_add_u32 {P(vTr13)}, s{sB}, {P(vTr13)}')
        a(f's_lshl_b32 s{sA}, {G}, 13\ns_add_u32 s{sA}, s{sA}, {WS_AG}\nv_lshlrev_b32 {P(t3)}, 4, {P(vl)}\nv_add_u32 {P(vAG)}, s{sA}, {P(t3)}\nv_add_u32 {P(vAG2)}, 4096, {P(vAG)}')
        a(f'v_lshlrev_b32 {P(vHg)}, 3, {P(vl)}\ns_add_u32 s{sB}, s{sA}, {AG_H}\nv_add_u32 {P(vHg)}, s{sB}, {P(vHg)}')
        a(f's_lshl_b32 s{sC}, {J}, 4\ns_add_u32 s{sB}, s{sB}, s{sC}\ns_lshl_b32 s{sC}, {W}, 2\ns_add_u32 s{sB}, s{sB}, s{sC}\nv_mov_b32 {P(vHp)}, s{sB}')
        a(f's_lshl_b32 s{sC}, {J}, 5\ns_add_u32 s{sB}, s{sA}, s{sC}\nv_lshlrev_b32 {P(vOp)}, 3, {P(t0)}\nv_add_u32 {P(vOp)}, s{sB}, {P(vOp)}')
        a(f's_lshl_b32 s{sC}, {W}, 3\ns_add_u32 s{sB}, s{sB}, s{sC}\ns_add_u32 s{sB}, s{sB}, {AG_Q1}\nv_mov_b32 {P(vQp)}, s{sB}')
        a(f's_lshl_b32 s{sA}, {G}, 11\nv_lshlrev_b32 {P(vQA)}, 5, {P(vl)}\nv_add_u32 {P(vQA)}, s{sA}, {P(vQA)}')
        a(f's_lshl_b32 s{sB}, {J}, 6\ns_add_u32 s{sB}, s{sB}, s{sA}\ns_lshl_b32 s{sC}, {W}, 4\ns_add_u32 s{sC}, s{sC}, s{sB}\nv_mov_b32 {P(vPubT)}, s{sC}')
        a(f's_add_u32 s{sC}, s{sA}, {WS_ML}\nv_add_u32 {P(vMLa)}, s{sC}, {P(t3)}')
        a(f's_add_u32 s{sC}, s{sB}, {WS_ML}\nv_lshlrev_b32 {P(t4)}, 4, {P(t1)}\nv_add_u32 {P(vMLp)}, s{sC}, {P(t4)}\nv_add_u32 {P(vMr)}, {L_M}, {P(t4)}')
        a(f's_lshl_b32 s{sC}, {G}, 16\ns_lshl_b32 s{sD}, {J}, 11\ns_add_u32 s{sC}, s{sC}, s{sD}\ns_add_u32 s{sC}, s{sC}, {WS_OP}\nv_add_u32 {P(vOPa)}, s{sC}, {P(t3)}')
        a(f's_lshl_b32 s{sC}, {J}, 3\ns_add_u32 s{sC}, s{sC}, {G}\ns_lshr_b32 s{sD}, s{sC}, 6\ns_lshl_b32 s{sD}, s{sD}, 14\ns_and_b32 s{sC}, s{sC}, 63\ns_lshl_b32 s{sC}, s{sC}, 7\ns_add_u32 s{sC}, s{sC}, s{sD}')
        a(f's_lshl_b32 s{sD}, {W}, 4\ns_add_u32 s{sC}, s{sC}, s{sD}\ns_add_u32 s{sC}, s{sC}, {WS_Y}\nv_mov_b32 {P(vYa)}, s{sC}')
        a(f's_add_u32 s{sD}, s{sD}, {L_YZ}\nv_mov_b32 {P(vYL)}, s{sD}')
        a(f'v_mul_u32_u24 {P(t3)}, 320, {P(t0)}\nv_and_b32 {P(t4)}, 15, {P(vl)}\nv_lshl_add_u32 {P(t3)}, {P(t4)}, 4, {P(t3)}\nv_add_u32 {P(vQw)}, {L_Q}, {P(t3)}')
        a(f'v_lshlrev_b32 {P(t3)}, 6, {P(t0)}\nv_lshl_add_u32 {P(t3)}, {P(t1)}, 4, {P(t3)}\nv_add_u32 {P(vPr)}, {L_P}, {P(t3)}')
        a(f'v_lshlrev_b32 {P(vXL)}, 4, {P(vl)}\nv_add_u32 {P(vXL)}, {L_X}, {P(vXL)}\nv_lshlrev_b32 {P(vXH)}, 3, {P(vl)}\nv_add_u32 {P(vXH)}, {L_X}, {P(vXH)}')
        a(f'v_mov_b32 {P(vZ)}, 0\nv_mov_b32 {P(vOne)}, 0x3f803f80\nv_mov_b32 {P(vOneI)}, 1\nv_mov_b32 {P(vP4)}, 0\ns_lshl_b32 s{sA}, {W}, 2\nv_mov_b32 {P(vFl)}, s{sA}')
        for i in range(4): a(f'v_mov_b32 {P(ONE4+i)}, {P(vOne)}')
        a(f's_mov_b32 s{sHi}, 0xffff0000\ns_mov_b32 s{sPerm}, 0x07060302\ns_mov_b32 s{sF00}, 0xffffff00')
        a('s_waitcnt lgkmcnt(0)')
        a(f's_add_u32 s{sT}, s{sE}, 1\nv_mov_b32 {P(vT32)}, s{sT}\nv_and_b32 {P(vT16)}, 0xffff, {P(vT32)}\nv_and_b32 {P(vT8)}, 0xff, {P(vT32)}')
        a(f's_getreg_b32 s{sD}, hwreg(HW_REG_XCC_ID, 0, 4)\ns_lshl_b32 s{sD}, s{sD}, 12\nv_xor_b32 {P(vT16x)}, s{sD}, {P(vT16)}')
        self.stamp('D', 'E', once=True, pro=True)
        a('s_waitcnt vmcnt(0)')
        self.stamp('D', 'xland', once=True, pro=True)
        lx = self.lab('d2b')
        a(f's_cmp_lg_u32 {W}, 2\ns_cbranch_scc1 {lx}')
        a(f's_lshl_b32 s{sA}, {G}, 13\ns_lshl_b32 s{sB}, {J}, 8\ns_add_u32 s{sA}, s{sA}, s{sB}\ns_add_u32 s{sA}, s{sA}, {WS_AG}\nv_lshlrev_b32 {P(t0)}, 7, {P(vl)}\nv_add_u32 {P(t0)}, s{sA}, {P(t0)}')
        a(f's_mov_b64 exec, 3\nglobal_load_dword {P(vDum)}, {P(t0)}, {S2(sWS)} sc1\ns_mov_b64 exec, -1')
        a.label(lx)
        self.wait_flag(vZ, MS_WQ, 1, R, 1, sleep=1)
        for p in range(2):
            for i in range(4):
                a(f'ds_read_b64_tr_b16 {P(WQ+2*(4*p+i),2)}, {P(vTr)} offset:{L_WQ + 256*i + 128*p}')
        a('s_waitcnt lgkmcnt(0)')
        self.colsum(WQ, csq, ACC, vOne, t0)
        a.label('L_D_loop')
        lq1 = self.lab('q1'); lq2 = self.lab('q2')
        self.sched(self.ln_gemv(XP, WQ, csq, ACC, y, s1, s2, vOne, t0, t1))
        a(f's_cmp_lg_u32 s{sPass}, 0\ns_cbranch_scc1 {lq1}')
        a(f'v_cvt_pk_bf16_f32 {P(t0)}, {P(y)}, {P(y)}\nv_add_u32 {P(t1)}, {WS_QA}, {P(vPubT)}\nv_add_u32 {P(t2)}, {WS_QB}, {P(vPubT)}')
        a(f'v_and_or_b32 {P(Gr)}, {P(t0)}, s{sHi}, {P(vT16x)}\nv_and_or_b32 {P(Ga)}, {P(t0)}, s{sHi}, {P(vT16)}')
        self.quad_gather(Gr); self.quad_gather(Ga)
        a(f's_mov_b64 exec, 1\nglobal_store_dwordx4 {P(t1)}, {P(Gr,4)}, {S2(sWS)}\nglobal_store_dwordx4 {P(t2)}, {P(Ga,4)}, {S2(sWS)} sc1\ns_mov_b64 exec, -1')
        a(f's_branch {lq2}')
        a.label(lq1, keep=False)
        self.pack4(y, Gr, t0)
        a('s_mov_b64 exec, 1')
        self.publish(f'global_store_dwordx2 {P(vQp)}, {P(Gr,2)}, {S2(sWS)}')
        a('s_mov_b64 exec, -1')
        a.label(lq2)
        self.stamp('D', 'qpub'); self.stamp('D', 'qpub', pro=True)
        lx = self.lab('pt'); l3 = self.lab('pt3')
        a(f's_cmp_lg_u32 s{sPass}, 0\ns_cbranch_scc1 {lx}')
        a(f's_cmp_lg_u32 {W}, 2\ns_cbranch_scc1 {l3}')
        a(f's_lshl_b32 s{sC}, {G}, 16\ns_lshl_b32 s{sD}, {J}, 11\ns_add_u32 s{sC}, s{sC}, s{sD}\ns_add_u32 s{sC}, s{sC}, {WS_OP}\nv_lshlrev_b32 {P(t0)}, 7, {P(vl)}\nv_add_u32 {P(t0)}, s{sC}, {P(t0)}')
        a(f's_mov_b64 exec, 0xffff\nglobal_load_dword {P(vDum)}, {P(t0)}, {S2(sWS)} sc1\ns_mov_b64 exec, -1')
        a.label(l3)
        a(f's_cmp_lg_u32 {W}, 3\ns_cbranch_scc1 {lx}')
        a(f'v_and_b32 {P(t0)}, 7, {P(vl)}\ns_lshl_b32 s{sC}, {J}, 3\nv_add_u32 {P(t0)}, s{sC}, {P(t0)}\nv_lshrrev_b32 {P(t1)}, 6, {P(t0)}\nv_lshlrev_b32 {P(t1)}, 14, {P(t1)}\nv_and_b32 {P(t0)}, 63, {P(t0)}\nv_lshl_add_u32 {P(t0)}, {P(t0)}, 7, {P(t1)}')
        a(f'v_lshrrev_b32 {P(t1)}, 3, {P(vl)}\nv_and_b32 {P(t1)}, 1, {P(t1)}\nv_lshl_add_u32 {P(t0)}, {P(t1)}, 13, {P(t0)}\nv_lshrrev_b32 {P(t1)}, 4, {P(vl)}\nv_lshl_add_u32 {P(t0)}, {P(t1)}, 16, {P(t0)}\nv_add_u32 {P(t0)}, {WS_Y}, {P(t0)}')
        a(f'global_load_dword {P(vDum)}, {P(t0)}, {S2(sWS)} sc1')
        a.label(lx)
        lx = self.lab('qg'); lg1 = self.lab('qg1'); lgB = self.lab('qgB'); lqm = self.lab('qm')
        a(f's_cmp_lg_u32 {W}, 0\ns_cbranch_scc1 {lx}')
        a(f's_cmp_lg_u32 s{sPass}, 0\ns_cbranch_scc1 {lg1}')
        if self.force_slow: a(f's_branch {lgB}')
        a(f'v_add_u32 {P(t4)}, {WS_QA}, {P(vQA)}')
        self.poll_tag16(R, R + 8, t4, vT16x, 2, limit=NA_POLL, onfail=lgB)
        a(f's_mov_b32 s{sMode}, 0\ns_branch {lqm}')
        a.label(lgB, keep=False)
        a(f'v_add_u32 {P(t4)}, {WS_QB}, {P(vQA)}')
        self.poll_tag16(R, R + 8, t4, vT16, 2)
        a(f's_mov_b32 s{sMode}, 1')
        a.label(lqm)
        for i in range(4): a(f'v_perm_b32 {P(Gr+i)}, {P(R+2*i+1)}, {P(R+2*i)}, s{sPerm}')
        a(f'v_mov_b32 {P(t0)}, s{sMode}\nds_write_b128 {P(vQw)}, {P(Gr,4)}\nds_write_b32 {P(vZ)}, {P(t0)} offset:{F_MODE}')
        self.set_flag(vZ, F_X0, vOneI)
        a(f's_branch {lx}')
        a.label(lg1, keep=False)
        self.poll_dense(R, 4, vAG2, AG_Q1 - 4096, R + 8, 2)
        a(f'ds_write_b128 {P(vQw)}, {P(R,4)}\ns_waitcnt lgkmcnt(0)')
        a.label(lx)
        lb1 = self.lab('b1'); ld123 = self.lab('d123'); lo = self.lab('dO'); ls3 = self.lab('s3')
        a(f's_cmp_eq_u32 s{sPass}, 0\ns_cbranch_scc1 {lb1}')
        a('s_barrier\ns_barrier')
        a(f's_cmp_lg_u32 {W}, 0\ns_cbranch_scc1 {lo}\ns_branch {ls3}')
        a.label(lb1, keep=False)
        a(f's_cmp_lg_u32 {W}, 0\ns_cbranch_scc1 {ld123}')
        self.wait_flag(vZ, F_PF, 4, Ga, 14, sleep=1)
        a.label(ls3)
        for gq in range(4): a(f'ds_read_b128 {P(Pa+4*gq,4)}, {P(vPr)} offset:{256*gq}')
        a(f'ds_read_b128 {P(M4,4)}, {P(vMr)}\ns_waitcnt lgkmcnt(0)')
        L = [f'v_mfma_f32_16x16x32_bf16 {P(LL+4*gq,4)}, {P(ONE4,4)}, {P(Pa+4*gq,4)}, 0' for gq in range(4)]
        L += [f'v_max3_f32 {P(t0)}, {P(M4)}, {P(M4+1)}, {P(M4+2)}', f'v_max_f32 {P(Gr)}, {P(t0)}, {P(M4+3)}']
        L += [f'v_sub_f32 {P(M4+i)}, {P(M4+i)}, {P(Gr)}' for i in range(4)] + [f'v_exp_f32 {P(M4+i)}, {P(M4+i)}' for i in range(4)]
        L += [f'v_mul_f32 {P(Gr+1)}, {P(M4)}, {P(LL)}'] + [f'v_fmac_f32 {P(Gr+1)}, {P(M4+i)}, {P(LL+4*i)}' for i in range(1, 4)]
        L += [f'v_mov_b32 {P(Gr+2)}, {P(vT32)}', f'v_mov_b32 {P(Gr+3)}, {P(vT32)}']
        self.sched(L)
        a('s_mov_b64 exec, 15')
        self.publish(f'global_store_dwordx4 {P(vMLp)}, {P(Gr,4)}, {S2(sWS)}')
        a('s_mov_b64 exec, -1')
        ldml = f'global_load_dwordx4 {P(Ga,4)}, {P(vMLa)}, {S2(sWS)} sc1\nglobal_load_dwordx4 {P(Gb,4)}, {P(vMLa)}, {S2(sWS)} offset:1024 sc1'
        ldop = f'global_load_dwordx4 {P(Ra,4)}, {P(vOPa)}, {S2(sWS)} sc1\nglobal_load_dwordx4 {P(Rb,4)}, {P(vOPa)}, {S2(sWS)} offset:1024 sc1'
        lp = self.lab('ml'); ok = self.lab('ok')
        self.spin_init()
        a.label(lp)
        a(ldml + '\ns_waitcnt vmcnt(0)')
        a(f'v_bitop3_b32 {P(t0)}, {P(Ga+2)}, {P(Gb+2)}, {P(vT32)} bitop3:0x7e\nv_cmp_ne_u32 vcc, 0, {P(t0)}\ns_cbranch_vccz {ok}')
        self.spin_tail(lp, 3)
        a.label(ok)
        self.stamp('D', 'mlgot')
        a(ldop)
        L = [f'v_max_f32 {P(t0)}, {P(Ga)}, {P(Gb)}'] + self.allred('v_max_f32', t0, t1)
        L += [f'v_sub_f32 {P(wa)}, {P(Ga)}, {P(t0)}', f'v_sub_f32 {P(wb)}, {P(Gb)}, {P(t0)}', f'v_exp_f32 {P(wa)}, {P(wa)}', f'v_exp_f32 {P(wb)}, {P(wb)}',
              f'v_mul_f32 {P(t2)}, {P(wa)}, {P(Ga+1)}', f'v_fmac_f32 {P(t2)}, {P(wb)}, {P(Gb+1)}'] + self.allred('v_add_f32', t2, t3)
        L += [f'v_rcp_f32 {P(t2)}, {P(t2)}', f'v_mul_f32 {P(wa)}, {P(wa)}, {P(t2)}', f'v_mul_f32 {P(wb)}, {P(wb)}, {P(t2)}']
        self.sched(L)
        lp = self.lab('op'); ok = self.lab('ok'); lin = self.lab('opin')
        self.spin_init()
        a(f's_branch {lin}')
        a.label(lp, keep=False)
        a(ldop)
        a.label(lin)
        a('s_waitcnt vmcnt(0)')
        for i in range(8): a(f'v_xor_b32 {P(Ra+i)}, {P(Ra+i)}, {P(vT8)}')
        a(f'v_or3_b32 {P(t0)}, {P(Ra)}, {P(Ra+1)}, {P(Ra+2)}\nv_or3_b32 {P(t1)}, {P(Ra+3)}, {P(Rb)}, {P(Rb+1)}\nv_or3_b32 {P(t0)}, {P(t0)}, {P(Rb+2)}, {P(Rb+3)}\nv_or_b32 {P(t0)}, {P(t0)}, {P(t1)}\nv_and_b32 {P(t0)}, 0xff, {P(t0)}\nv_cmp_ne_u32 vcc, 0, {P(t0)}')
        a(f's_cbranch_vccz {ok}')
        self.spin_tail(lp, 4)
        a.label(ok)
        self.stamp('D', 'opgot')
        L = [f'v_mul_f32 {P(Ra+i)}, {P(wa)}, {P(Ra+i)}' for i in range(4)] + [f'v_fmac_f32 {P(Ra+i)}, {P(wb)}, {P(Rb+i)}' for i in range(4)]
        for s in (4, 8): L += [f'v_add_f32_dpp {P(Ra+i)}, {P(Ra+i)}, {P(Ra+i)} ' + DPP(f'row_ror:{s}') for i in range(4)]
        L += [f'v_permlane16_swap_b32 {P(Ra)}, {P(Ra+1)}', f'v_permlane16_swap_b32 {P(Ra+2)}, {P(Ra+3)}',
              f'v_add_f32 {P(Ra)}, {P(Ra)}, {P(Ra+1)}', f'v_add_f32 {P(Ra+2)}, {P(Ra+2)}, {P(Ra+3)}',
              f'v_permlane32_swap_b32 {P(Ra)}, {P(Ra+2)}', f'v_add_f32 {P(Ra)}, {P(Ra)}, {P(Ra+2)}']
        self.sched(L)
        self.pack4(Ra, Gr, t0)
        a(f's_mov_b32 exec_lo, 0x00010001\ns_mov_b32 exec_hi, 0x00010001')
        self.publish(f'global_store_dwordx2 {P(vOp)}, {P(Gr,2)}, {S2(sWS)}')
        a('s_mov_b64 exec, -1')
        if not self.single: self.set_flag(vP4, F_O, vOneI)
        self.stamp('D', 'opub')
        a(f's_branch {lo}')
        a.label(ld123, keep=False)
        self.wait_flag(vZ, F_X0, 1, R, 15, sleep=4)
        a(f'ds_read_b32 {P(t0)}, {P(vZ)} offset:{F_MODE}\ns_waitcnt lgkmcnt(0)\nv_readfirstlane_b32 s{sMode}, {P(t0)}')
        a.label(lo)
        lx = self.lab('wo')
        a(f's_cmp_lg_u32 s{sPass}, 0\ns_cbranch_scc1 {lx}')
        self.wait_flag(vZ, MS_WO, 1, R, 5)
        for p in range(2):
            for i in range(4):
                a(f'ds_read_b64_tr_b16 {P(WO+2*(4*p+i),2)}, {P(vTr)} offset:{L_WO + 256*i + 128*p}')
        a('s_waitcnt lgkmcnt(0)')
        a.label(lx)
        self.ag(vAG, AG_O, XP, 4, vXL, vP4, FA_O, vOneI, R, 7, W, gate=(None if self.single else (vP4, F_O)))
        self.sched(self.mfma8(XP, WO, ACC) + self.accsum(ACC, y, t0) + [f'v_and_or_b32 {P(Gr)}, {P(y)}, s{sF00}, {P(vT8)}'])
        self.quad_gather(Gr)
        self.cross_publish(Gr, vYa, 0, vYL, 0, t1, vFl, F_Y, vOneI)
        self.stamp('D', 'ypub')
        lx = self.lab('w13')
        a(f's_cmp_lg_u32 s{sPass}, 0\ns_cbranch_scc1 {lx}')
        self.wait_flag(vZ, MS_W13, 2, R, 8)
        lodd = self.lab('odd'); ljn = self.lab('jn')
        a(f's_mov_b32 vcc_lo, 0x33333333\ns_mov_b32 vcc_hi, 0x33333333')
        a(f's_bitcmp1_b32 {W}, 0\ns_cbranch_scc1 {lodd}')
        for par in range(2):
            if par == 1: a.label(lodd, keep=False)
            qp = '[0,1,0,1]' if par == 0 else '[2,3,2,3]'
            for p in range(2):
                for i in range(4):
                    off = 128*i + 64*p
                    a(f'ds_read_b64_tr_b16 {P(R,2)}, {P(vTr13)} offset:{L_W1 + off}\nds_read_b64_tr_b16 {P(R+2,2)}, {P(vTr13)} offset:{L_W3 + off}\ns_waitcnt lgkmcnt(0)')
                    for h in range(2): a(f'v_mov_b32_dpp {P(R+4+h)}, {P(R+h)} ' + DPP(f'quad_perm:{qp}'))
                    for h in range(2): a(f'v_cndmask_b32_dpp {P(W13 + 2*(4*p+i) + h)}, {P(R+2+h)}, {P(R+4+h)}, vcc ' + DPP(f'quad_perm:{qp}'))
            if par == 0: a(f's_branch {ljn}')
        a.label(ljn)
        for i in range(4): a(f'ds_read_b64_tr_b16 {P(W2+2*i,2)}, {P(vTr2)} offset:{L_W2 + 128*i}')
        a('s_waitcnt lgkmcnt(0)')
        self.colsum(W13, cs13, ACC, vOne, t0)
        a.label(lx)
        lx = self.lab('noffn')
        a(f's_cmp_ge_u32 {J}, 28\ns_cbranch_scc1 {lx}')
        self.ag(vAG, AG_X1, XP, 4, vXL, vP4, FA_X1, vOneI, R, 10, W, gate=(vP4, F_X1), stamp='x1got')
        L = self.ln_gemv(XP, W13, cs13, ACC, y, s1, s2, vOne, t0, t1)
        L += [f'v_cvt_pk_bf16_f32 {P(t0)}, {P(y)}, {P(y)}', f'v_and_b32 {P(t0)}, s{sHi}, {P(t0)}',
              f'v_mul_f32 {P(t1)}, 0xbfb8aa3b, {P(t0)}', f'v_exp_f32 {P(t1)}, {P(t1)}', f'v_add_f32 {P(t1)}, 1.0, {P(t1)}', f'v_rcp_f32 {P(t1)}, {P(t1)}', f'v_mul_f32 {P(t1)}, {P(t0)}, {P(t1)}',
              f'v_cvt_pk_bf16_f32 {P(t1)}, {P(t1)}, {P(t1)}', f'v_and_b32 {P(t1)}, s{sHi}, {P(t1)}',
              f'v_mul_f32_dpp {P(t1)}, {P(t0)}, {P(t1)} ' + DPP('quad_perm:[2,3,2,3]'),
              f'v_mov_b32_dpp {P(t2)}, {P(t1)} ' + DPP('quad_perm:[1,1,1,1]'),
              f'v_cvt_pk_bf16_f32 {P(Gr)}, {P(t1)}, {P(t2)}', f'v_min_u32 {P(Gr)}, 0xfffffffe, {P(Gr)}']
        self.sched(L)
        a('s_mov_b64 exec, 1')
        self.publish(f'global_store_dword {P(vHp)}, {P(Gr)}, {S2(sWS)}')
        a('s_mov_b64 exec, -1')
        a.label(lx)
        self.ag(vHg, 0, XP, 2, vXH, vP4, FA_H, vOneI, R, 11, W, stamp='hgot', h=True)
        L = [f'v_mfma_f32_4x4x4_16b_bf16 {P(ACC+4*i,4)}, {P(XP,2)}, {P(W2+2*i,2)}, 0' for i in range(4)]
        self.sched(L + self.accsum(ACC, y, t0) + [f'v_and_or_b32 {P(Gr)}, {P(y)}, s{sF00}, {P(vT8)}'])
        self.quad_gather(Gr)
        self.cross_publish(Gr, vYa, 0x10000, vYL, 64, t1, vFl, F_Z, vOneI)
        self.stamp('D', 'zpub')
        if self.onepass: a('s_branch L_D_end')
        a(f's_cmp_lg_u32 s{sPass}, 0\ns_cbranch_scc1 L_D_end')
        a(f's_mov_b32 s{sPass}, 1\ns_add_u32 s{sT}, s{sT}, 1\nv_mov_b32 {P(vT32)}, s{sT}\nv_and_b32 {P(vT8)}, 0xff, {P(vT32)}')
        a(f'v_add_u32 {P(vYa)}, 0x20000, {P(vYa)}\nv_add_u32 {P(vYL)}, 128, {P(vYL)}\nv_mov_b32 {P(vP4)}, 4\nv_add_u32 {P(vFl)}, 32, {P(vFl)}')
        a(f'v_add_u32 {P(vAG)}, 1024, {P(vAG)}\nv_add_u32 {P(vHg)}, 1024, {P(vHg)}\nv_add_u32 {P(vHp)}, 1024, {P(vHp)}\nv_add_u32 {P(vOp)}, 1024, {P(vOp)}')
        self.ag(vAG2, AG_X2 - 4096, XP, 4, vXL, vZ, FA_X2, vOneI, R, 13, W, gate=(vZ, F_X2))
        a('s_branch L_D_loop')
        a.label('L_D_end', keep=False)
        self.dump_stamps()
        a('s_endpgm')

    def ag(self, vaddr, off, XP, n, vXL, vflag, flag, vOneI, R, code, W, gate=None, stamp=None, h=False):
        a = self.a
        lo = self.lab('agO'); ld = self.lab('agD')
        if self.single: a(f's_cmp_lg_u32 {W}, 0\ns_cbranch_scc1 {lo}')
        if h: a(f'v_mov_b32 {P(XP)}, 0\nv_mov_b32 {P(XP+1)}, 0')
        if gate: self.wait_flag(gate[0], gate[1], 1, R + 8, code + 40, sleep=self.sleepx)
        if h: a('s_mov_b32 exec_hi, 0x00ffffff')
        self.poll_dense(XP, n, vaddr, off, R + 8, code)
        if h: a('s_mov_b64 exec, -1')
        if stamp: self.stamp('D', stamp)
        if self.single:
            a(f'ds_write_b{32*n} {P(vXL)}, {P(XP,n)}')
            self.set_flag(vflag, flag, vOneI)
            a(f's_branch {ld}')
            a.label(lo, keep=False)
            self.wait_flag(vflag, flag, 1, R + 8, code + 50, sleep=0, extra=f'ds_read_b{32*n} {P(XP,n)}, {P(vXL)}')
            if stamp: self.stamp('D', stamp)
            a.label(ld)
    def pack4(self, v, Gr, t):
        a = self.a
        a(f'v_mov_b32_dpp {P(t)}, {P(v)} ' + DPP('quad_perm:[1,1,3,3]'))
        a(f'v_cvt_pk_bf16_f32 {P(Gr)}, {P(v)}, {P(t)}\nv_min_u32 {P(Gr)}, 0xfffffffe, {P(Gr)}')
        a(f'v_mov_b32_dpp {P(Gr+1)}, {P(Gr)} ' + DPP('quad_perm:[2,2,2,2]'))
    def quad_gather(self, Gr):
        for i in range(1, 4): self.a(f'v_mov_b32_dpp {P(Gr+i)}, {P(Gr)} ' + DPP(f'quad_perm:[{i},{i},{i},{i}]'))
    def cross_publish(self, Gr, vYa, goff, vYL, loff, t, vFl, fl, vOneI):
        a = self.a
        a(f'v_add_u32 {P(t)}, {goff}, {P(vYa)}\nv_add_u32 {P(t+1)}, {goff + 8192}, {P(vYa)}\ns_mov_b64 exec, 1')
        a(f'global_store_dwordx4 {P(t)}, {P(Gr,4)}, {S2(sWS)} sc1\nglobal_store_dwordx4 {P(t+1)}, {P(Gr,4)}, {S2(sWS)} sc1')
        a(f'ds_write_b128 {P(vYL)}, {P(Gr,4)} offset:{loff}\nds_write_b32 {P(vFl)}, {P(vOneI)} offset:{fl}\ns_mov_b64 exec, -1')
    def mfma8(self, XP, Wt, ACC):
        L = []
        for p in range(2):
            for i in range(4):
                c = '0' if p == 0 else P(ACC+4*i, 4)
                L.append(f'v_mfma_f32_4x4x4_16b_bf16 {P(ACC+4*i,4)}, {P(XP+2*p,2)}, {P(Wt+2*(4*p+i),2)}, {c}')
        return L
    def accsum(self, ACC, y, t):
        return [f'v_add_f32 {P(y)}, {P(ACC)}, {P(ACC+5)}', f'v_add_f32 {P(t)}, {P(ACC+10)}, {P(ACC+15)}', f'v_add_f32 {P(y)}, {P(y)}, {P(t)}'] + self.allred('v_add_f32', y, t)
    def colsum(self, Wt, cs, ACC, vOne, t):
        a = self.a
        a(f'v_mov_b32 {P(ACC+8)}, {P(vOne)}\nv_mov_b32 {P(ACC+9)}, {P(vOne)}')
        for k in range(8):
            c = '0' if k < 2 else P(ACC + 4*(k & 1), 4)
            a(f'v_mfma_f32_4x4x4_16b_bf16 {P(ACC+4*(k&1),4)}, {P(ACC+8,2)}, {P(Wt+2*k,2)}, {c}')
        a(f'v_add_f32 {P(cs)}, {P(ACC)}, {P(ACC+4)}')
        for i in self.allred('v_add_f32', cs, t): a(i)
    def ln_gemv(self, XP, Wt, cs, ACC, y, s1, s2, vOne, t0, t1):
        L = self.mfma8(XP, Wt, ACC)
        for i in range(4):
            L.append(f'v_dot2_f32_bf16 {P(s1)}, {P(XP+i)}, {P(vOne)}, ' + ('0' if i == 0 else P(s1)))
            L.append(f'v_dot2_f32_bf16 {P(s2)}, {P(XP+i)}, {P(XP+i)}, ' + ('0' if i == 0 else P(s2)))
        L += self.accsum(ACC, y, t0)
        L += [f'v_permlane32_swap_b32 {P(s1)}, {P(s2)}', f'v_add_f32 {P(s1)}, {P(s1)}, {P(s2)}']
        L += [f'v_add_f32_dpp {P(s1)}, {P(s1)}, {P(s1)} ' + DPP(f'row_ror:{s}') for s in (1, 2, 4, 8)]
        L += [f'v_mov_b32 {P(t1)}, {P(s1)}', f'v_permlane16_swap_b32 {P(s1)}, {P(t1)}', f'v_add_f32 {P(s1)}, {P(s1)}, {P(t1)}',
              f'v_mov_b32 {P(s2)}, {P(s1)}', f'v_permlane32_swap_b32 {P(s1)}, {P(s2)}']
        L += [f'v_mul_f32 {P(s1)}, 0x3b000000, {P(s1)}', f'v_mul_f32 {P(s2)}, 0x3b000000, {P(s2)}',
              f'v_fma_f32 {P(s2)}, -{P(s1)}, {P(s1)}, {P(s2)}', f'v_add_f32 {P(s2)}, 0x3727c5ac, {P(s2)}', f'v_rsq_f32 {P(s2)}, {P(s2)}',
              f'v_fma_f32 {P(y)}, -{P(s1)}, {P(cs)}, {P(y)}', f'v_mul_f32 {P(y)}, {P(y)}, {P(s2)}']
        return L

HEADER = open(os.path.join(os.path.dirname(os.path.abspath(__file__)), 'header.txt')).read()
FOOTER = f'''.section .rodata,"a"
.p2align 6
.amdhsa_kernel {KN}
  .amdhsa_next_free_vgpr 168
  .amdhsa_next_free_sgpr 102
  .amdhsa_accum_offset 168
  .amdhsa_group_segment_fixed_size 0
  .amdhsa_kernarg_size 96
  .amdhsa_user_sgpr_count 2
  .amdhsa_user_sgpr_kernarg_segment_ptr 1
  .amdhsa_system_sgpr_workgroup_id_x 1
.end_amdhsa_kernel
'''
def generate(**kw):
    g = Gen(**kw)
    body = g.build()
    txt = HEADER + f'; @launch grid=(256,1,1) block=({64*NWAVES},1,1) lds={LDS_BYTES}\n' + body + FOOTER
    return txt, g

if __name__ == '__main__':
    import argparse, ast
    ap = argparse.ArgumentParser()
    ap.add_argument('-o', default='cdna_kernels/' + NAME + '.s')
    ap.add_argument('kw', nargs='?', default='{}')
    args = ap.parse_args()
    txt, g = generate(**eval('dict(' + args.kw.strip('{}') + ')'))
    open(args.o, 'w').write(txt)
    print('instructions', g.a.count, 'nops', g.a.nops, 'stamps', g.nstamp)
```
